```python
import torch

def _softmax(x, axis=-1):
    return torch.softmax(x, dim=axis)
def _gelu(x):
    return torch.nn.functional.gelu(x, approximate="tanh")
def _silu(x):
    return torch.nn.functional.silu(x)
def _sigmoid(x):
    return torch.sigmoid(x)
def _layernorm(x, axis=-1, eps=1e-5):
    m = x.mean(dim=axis, keepdim=True)
    v = x.var(dim=axis, keepdim=True, unbiased=False)
    return (x - m) / torch.sqrt(v + eps)
def _scatter_add(tgt, idx, src, axis=0):
    return tgt.clone().index_add_(axis, idx, src)
def _segment_sum(src, seg, n):
    out = torch.zeros((n,) + src.shape[1:], dtype=src.dtype)
    return out.index_add_(0, seg, src)
def _pad(x, pw):
    flat = tuple(v for pair in reversed(pw) for v in pair)
    return torch.nn.functional.pad(x, flat)

kernel_name = 'recurrent_scan__mha_block_cached__geglu_ffn__decode'

def setup_inputs():

    _w = (lambda a: (lambda t: t.to(torch.bfloat16) if t.is_floating_point() else t)(torch.as_tensor(a)))
    def _A_setup():
        B, Sq, D = 8, 1, 448
        H, Sk, Dh = 16, 4096, 256
        return {
            "x": _w((lambda *s: torch.randn(*s, dtype=torch.bfloat16) * 0.05)(B, Sq, D)),
            "k_cache": _w((lambda *s: torch.randn(*s, dtype=torch.bfloat16) * 1.6)(B, H, Sk, Dh)),
            "v_cache": _w((lambda *s: torch.randn(*s, dtype=torch.bfloat16) * 0.2)(B, H, Sk, Dh)),
            "wq": _w((lambda *s: torch.randn(*s, dtype=torch.bfloat16) * 1.6)(D, H * Dh) * (D ** -0.5)),
            "wo": _w((lambda *s: torch.randn(*s, dtype=torch.bfloat16) * 0.2)(H * Dh, D) * ((H * Dh) ** -0.5)),
        }
    _A_in = _A_setup()

    def _B_setup():
        B, S, D, F = 8, 1, 448, 1792
        return {
            "x": _w((lambda *s: torch.randn(*s, dtype=torch.bfloat16) * 0.05)(B, S, D)),
            "w_gate": _w((lambda *s: torch.randn(*s, dtype=torch.bfloat16) * 0.1)(D, F)),
            "w_up": _w((lambda *s: torch.randn(*s, dtype=torch.bfloat16) * 0.1)(D, F)),
            "w_down": _w((lambda *s: torch.randn(*s, dtype=torch.bfloat16) * 0.1)(F, D)),
        }
    _B_in = _B_setup()

    return {
        "A_x": _A_in["x"],
        "A_k_cache": _A_in["k_cache"],
        "A_v_cache": _A_in["v_cache"],
        "A_wq": _A_in["wq"],
        "A_wo": _A_in["wo"],
        "B_x": _B_in["x"],
        "B_w_gate": _B_in["w_gate"],
        "B_w_up": _B_in["w_up"],
        "B_w_down": _B_in["w_down"],
    }

def reference(A_x, A_k_cache, A_v_cache, A_wq, A_wo, B_x, B_w_gate, B_w_up, B_w_down):
    def _A_ref(x, k_cache, v_cache, wq, wo):
        B, Sq, D = x.shape
        H, Dh = 16, 256
        q = (lambda x, *d: x.permute(*d))((x @ wq).reshape(B, Sq, H, Dh), 0, 2, 1, 3)
        scores = torch.einsum("bhqd,bhkd->bhqk", q, k_cache) * (Dh ** -0.5)
        p = _softmax(scores, axis=-1)
        o = torch.einsum("bhqk,bhkd->bhqd", p, v_cache)
        return (lambda x, *d: x.permute(*d))(o, 0, 2, 1, 3).reshape(B, Sq, H * Dh) @ wo

    def _B_ref(x, w_gate, w_up, w_down):
        return (_gelu(x @ w_gate) * (x @ w_up)) @ w_down

    x = A_x
    xn = _layernorm(x, axis=-1)
    s = _A_ref(xn, A_k_cache, A_v_cache, A_wq, A_wo)
    g = _silu(_B_ref(xn, B_w_gate, B_w_up, B_w_down))
    return x + s * g
```

```python
import sys, struct
NAME="recurrent_scan__mha_block_cached__geglu_ffn__decode_kernel"
def f2u(x): return struct.unpack("<I",struct.pack("<f",x))[0]

def gen(D=20, PROF=0, WQF="", WF="", SLEEP=1, EV=32, WD=0, name=NAME):
    L=[]
    def A(s):
        for ln in s.split("\n"):
            ln=ln.strip()
            if ln: L.append(("" if ln.endswith(":") else "    ")+ln)
    NS=8; SLOT=16384
    PBUF=NS*SLOT; RED=PBUF+4096; FL=RED+16384
    O_READY=0; O_DONE=256; O_WFLAG=320; O_WMAX=384; O_WSUM=448; O_H=512
    LDS=FL+1024
    RECSZ=8192; R_Y=0; R_Z=2048; R_ML=4096; R_CLR=4352
    PROFBASE=4<<20
    W=40
    def w(i,n=4): return f"v[{W+i}:{W+i+n-1}]"
    def v(i,n): return f"v[{i}:{i+n-1}]"
    C1=f2u(1.4426950408889634/16.0)
    hdr=open("recurrent_scan__mha_block_cached__geglu_ffn__decode.s.ref").read().split("; Override")[0]
    L.append(hdr.rstrip())
    L.append(f"; @launch grid=(256,1,1) block=(576,1,1) lds={LDS}")
    L.append('.amdgcn_target "amdgcn-amd-amdhsa--gfx950"\n.text')
    L.append(f".globl {name}\n.p2align 8\n.type {name},@function\n{name}:")
    def stamp(k):
        if PROF: A(f"s_memrealtime s[{64+2*k}:{65+2*k}]")
    def srd(d,ptr,size):
        A(f"s_mov_b32 s{d}, s{ptr}\ns_mov_b32 s{d+1}, s{ptr+1}\ns_mov_b32 s{d+2}, {size}\ns_mov_b32 s{d+3}, 0x20000")
    lab=[0]
    def newlab(p):
        lab[0]+=1; return f"L_{p}{lab[0]}"
    def wd():
        if WD: A("s_sub_u32 s61, s61, 1\ns_cbranch_scc1 L_end")
    def setflag(off,val):
        A(f"v_mov_b32 v1, {val}\ns_mov_b64 exec, 1\nds_write_b32 v9, v1 offset:{off}\ns_mov_b64 exec, -1")
    def waitflag(off,val,sleep=0):
        a=newlab("w"); b=newlab("wd")
        A(f"""{a}:
        ds_read_b32 v1, v8 offset:{off}
        s_waitcnt lgkmcnt(0)
        v_cmp_gt_i32 vcc, {val}, v1
        s_cbranch_vccz {b}""")
        if sleep: A(f"s_sleep {sleep}")
        wd()
        A(f"s_branch {a}\n{b}:")
    def allred(op,x,t,rows=True,cross=True):
        for m in ("quad_perm:[1,0,3,2]","quad_perm:[2,3,0,1]","row_half_mirror")+(("row_mirror",) if rows else ()):
            A(f"s_nop 1\n{op}_dpp v{x}, v{x}, v{x} {m} row_mask:0xf bank_mask:0xf")
        if cross:
            for p in ("v_permlane16_swap_b32","v_permlane32_swap_b32"):
                A(f"v_mov_b32 v{t}, v{x}\ns_nop 1\n{p} v{x}, v{t}\ns_nop 1\n{op} v{x}, v{x}, v{t}")
    def rnd(x,t=None):
        A(f"v_cvt_pk_bf16_f32 v{x}, v{x}, v{x}\nv_and_b32 v{x}, 0xffff0000, v{x}")

    A(f"""s_cmp_ge_u32 s2, 256
    s_cbranch_scc1 L_end
    s_load_dwordx4 s[36:39], s[0:1], 8
    s_load_dwordx2 s[32:33], s[0:1], 0
    s_load_dwordx4 s[40:43], s[0:1], 24
    s_load_dwordx8 s[44:51], s[0:1], 48
    s_load_dwordx4 s[52:55], s[0:1], 80""")
    stamp(0)
    if WD: A(f"s_mov_b32 s61, {WD}")
    A(f"""v_lshrrev_b32 v1, 6, v0
    v_and_b32 v0, 63, v0
    v_readfirstlane_b32 s3, v1
    s_and_b32 s6, s2, 7
    s_lshl_b32 s6, s6, 2
    s_lshr_b32 s7, s2, 6
    s_add_u32 s6, s6, s7
    s_bfe_u32 s5, s2, 0x30003
    s_lshl_b32 s7, s5, 5
    s_add_u32 s7, s7, s6
    s_cmp_lg_u32 s3, 0
    s_cbranch_scc1 L_worker""")
    A("s_setprio 3")
    A("""v_lshrrev_b32 v1, 5, v0
    v_lshlrev_b32 v2, 4, v0
    v_lshlrev_b32 v1, 5, v1
    v_xor_b32 v4, v2, v1
    v_xor_b32 v5, 64, v4
    v_xor_b32 v6, 0x80, v4
    v_xor_b32 v7, 0xc0, v4
    s_lshl_b32 s24, s7, 20
    s_waitcnt lgkmcnt(0)
    s_add_u32 s8, s36, s24
    s_addc_u32 s9, s37, 0
    s_mov_b32 s10, 0x100000
    s_mov_b32 s11, 0x20000
    s_add_u32 s12, s38, s24
    s_addc_u32 s13, s39, 0
    s_mov_b32 s25, 0
    s_mov_b32 s26, 0""")
    def ld(i): A(f"buffer_load_dwordx4 v{4+i}, s[8:11], s26 offen offset:{i*1024} nt lds")
    for q in range(4):
        A(f"s_mov_b32 m0, {q*4096}\ns_mov_b32 s26, {q*4096}")
        for i in range(4): ld(i)
    A(f"""v_lshlrev_b32 v8, 2, v0
    v_add_u32 v8, {FL}, v8
    v_mov_b32 v1, 0
    ds_write_b32 v8, v1 offset:0
    ds_write_b32 v8, v1 offset:256
    v_and_b32 v9, 7, v0
    v_lshlrev_b32 v9, 2, v9
    v_add_u32 v9, {FL}, v9
    s_waitcnt lgkmcnt(0)
    s_barrier
    s_mov_b32 s25, 1
    s_mov_b32 s26, {SLOT-4096}
    s_mov_b32 s27, {SLOT}
    v_mov_b32 v10, 0""")
    if PROF: A("s_mov_b32 s30, 0")
    lagi=(D+15)%16; lags=(D+15)//16
    A(f"""L_ld_loop:
    s_sub_u32 s28, s25, {NS-1}
    s_waitcnt lgkmcnt(0)
    v_cmp_gt_i32 vcc, s28, v10
    s_cbranch_vccz L_ld_go
    L_ld_spin:""")
    if PROF: A("s_add_u32 s30, s30, 1")
    wd()
    A(f"""ds_read_b32 v10, v9 offset:{O_DONE}
    s_waitcnt lgkmcnt(0)
    v_cmp_gt_i32 vcc, s28, v10
    s_cbranch_vccnz L_ld_spin
    L_ld_go:""")
    for q in range(4):
        A(f"s_add_u32 m0, s27, {q*4096}\ns_add_u32 s26, s26, 4096")
        for i in range(4):
            A(f"s_waitcnt vmcnt({D-1})")
            ld(i)
            if q*4+i==lagi:
                A(f"s_sub_u32 s29, s25, {lags-1}\nv_mov_b32 v2, s29\nds_write_b32 v8, v2 offset:{O_READY}")
            if q*4+i==14:
                A(f"ds_read_b32 v10, v9 offset:{O_DONE}")
    A(f"""s_add_u32 s25, s25, 1
    s_add_u32 s27, s27, {SLOT}
    s_and_b32 s27, s27, {NS*SLOT-1}
    s_cmp_eq_u32 s25, 64
    s_cselect_b32 s8, s12, s8
    s_cselect_b32 s9, s13, s9
    s_cselect_b32 s26, -4096, s26
    s_cmp_lt_u32 s25, 128
    s_cbranch_scc1 L_ld_loop""")
    for u in range(128-lags,128):
        A(f"v_mov_b32 v2, {u+1}\ns_waitcnt vmcnt({min(D-1,16*(127-u))})\nds_write_b32 v8, v2 offset:{O_READY}")
    if PROF:
        stamp(1)
        srd(20,54,0x40000000)
        A(f"""s_waitcnt lgkmcnt(0)
        s_lshl_b32 s24, s2, 8
        s_add_u32 s24, s24, {PROFBASE}
        v_mov_b32 v4, s64
        v_mov_b32 v5, s66
        v_mov_b32 v6, s30
        s_getreg_b32 s31, hwreg(HW_REG_XCC_ID)
        v_mov_b32 v7, s31
        v_mov_b32 v1, 0
        s_mov_b64 exec, 1
        buffer_store_dwordx4 v[4:7], v1, s[20:23], s24 offen""")
    A("s_waitcnt lgkmcnt(0)\ns_endpgm")
    A(f"""L_worker:
    s_sub_u32 s4, s3, 1
    v_lshrrev_b32 v2, 4, v0
    v_and_b32 v3, 15, v0
    v_mul_u32_u24 v11, 28, v2
    v_lshlrev_b32 v12, 4, v0
    v_mul_u32_u24 v13, {14*8192}, v2
    v_lshl_add_u32 v13, v3, 4, v13
    s_mul_i32 s24, s5, 896
    s_mul_i32 s25, s4, 112
    s_lshr_b32 s26, s6, 1
    s_lshl_b32 s26, s26, 9
    s_mul_i32 s27, s4, {56*8192}
    s_add_u32 s26, s26, s27
    s_waitcnt lgkmcnt(0)
    s_add_u32 s8, s32, s24
    s_addc_u32 s9, s33, 0
    s_mov_b32 s10, 896
    s_mov_b32 s11, 0x20000""")
    srd(12,40,448*4096*2)
    A("""buffer_load_dwordx4 v[16:19], v12, s[8:11], 0 offen
    buffer_load_dwordx4 v[24:27], v11, s[8:11], s25 offen
    buffer_load_dwordx3 v[28:30], v11, s[8:11], s25 offen offset:16""")
    for i in range(14):
        for hf in range(2):
            A(f"buffer_load_dwordx4 {w(i*8+hf*4)}, v13, s[12:15], s26 offen offset:{hf*256} {WQF}")
        if i<13: A("s_add_u32 s26, s26, 8192")
    A(f"""s_mul_i32 s24, s7, {RECSZ}
    s_add_u32 s16, s54, s24
    s_addc_u32 s17, s55, 0
    s_mov_b32 s18, {R_CLR}
    s_mov_b32 s19, 0x20000
    v_mov_b32 v20, -1
    v_mov_b32 v21, -1
    v_mov_b32 v22, -1
    v_mov_b32 v23, -1
    s_lshl_b32 s25, s4, 10
    buffer_store_dwordx4 v[20:23], v12, s[16:19], s25 offen sc1""")
    srd(20,54,0x40000000)
    A(f"""v_and_b32 v1, 1, v3
    v_cmp_eq_u32 vcc, 1, v1
    v_mov_b32 v14, 0xffff
    v_mov_b32 v15, 0xffff0000
    v_cndmask_b32 v14, v14, v15, vcc
    v_lshrrev_b32 v1, 1, v3""")
    for r in range(4):
        A(f"v_cmp_eq_u32 vcc, {r}, v1\ns_nop 1\nv_cndmask_b32 v{4+r}, 0, v14, vcc")
    A(f"""v_and_b32 v8, 7, v0
    v_lshlrev_b32 v8, 2, v8
    v_add_u32 v8, {FL}, v8
    s_lshl_b32 s25, s4, 2
    s_add_u32 s25, s25, {FL}
    v_mov_b32 v9, s25
    v_add_u32 v10, {RED}, v12""")
    for i in range(112,128): A(f"v_mov_b32 v{W+i}, 0")
    A("s_barrier")
    setflag(O_DONE,"s4")
    A("s_waitcnt vmcnt(29)")
    for k in range(4):
        A(f"v_lshlrev_b32 v{32+2*k}, 16, v{16+k}\nv_and_b32 v{33+2*k}, 0xffff0000, v{16+k}")
    A("v_add_f32 v1, v32, v33")
    for k in range(2,8): A(f"v_add_f32 v1, v1, v{32+k}")
    allred("v_add_f32",1,2)
    A(f"v_mul_f32 v1, {f2u(1.0/448)}, v1\nv_mov_b32 v3, 0")
    for k in range(8): A(f"v_sub_f32 v2, v{32+k}, v1\nv_fmac_f32 v3, v2, v2")
    A("v_cmp_gt_u32 vcc, 56, v0\ns_nop 1\nv_cndmask_b32 v3, 0, v3, vcc")
    allred("v_add_f32",3,2)
    A(f"v_mul_f32 v3, {f2u(1.0/448)}, v3")
    rnd(1); rnd(3)
    A(f"v_add_f32 v3, {f2u(1e-5)}, v3"); rnd(3)
    A("v_sqrt_f32 v3, v3\ns_nop 0"); rnd(3)
    A("v_rcp_f32 v2, v3\ns_nop 0")
    A("v_fma_f32 v14, -v3, v2, 1.0\nv_fmac_f32 v2, v14, v2")
    for k in range(6,-1,-1):
        A(f"v_and_b32 v{25+2*k}, 0xffff0000, v{24+k}\nv_lshlrev_b32 v{24+2*k}, 16, v{24+k}")
    for k in range(14):
        x=24+k
        A(f"v_sub_f32 v{x}, v{x}, v1"); rnd(x)
        A(f"""v_mul_f32 v14, v{x}, v2
        v_fma_f32 v15, -v14, v3, v{x}
        v_fmac_f32 v14, v15, v2
        v_cvt_pk_bf16_f32 v{x}, v14, v14""")
    for i in range(14):
        bt=W+112+(i&1)*4
        for r in range(4): A(f"v_and_b32 v{bt+r}, v{4+r}, v{24+i}")
        A(f"s_waitcnt vmcnt({27-2*i})\ns_nop 1")
        for hf in range(2):
            c="0" if i==0 else v(16+4*hf,4)
            A(f"v_mfma_f32_16x16x32_bf16 {v(16+4*hf,4)}, {w(i*8+hf*4)}, {v(bt,4)}, {c}")
    A(f"""s_lshl_b32 s25, s4, 10
    v_add_u32 v11, s25, v10
    s_nop 7""")
    for r in range(4): A(f"v_add_f32_dpp v{16+r}, v{20+r}, v{16+r} row_ror:8 row_mask:0xf bank_mask:0xf")
    A("ds_write_b128 v11, v[16:19]\ns_waitcnt vmcnt(0)")
    setflag(O_WFLAG,1)
    A(f"""v_lshrrev_b32 v2, 4, v0
    v_and_b32 v3, 7, v0
    v_and_b32 v12, 8, v0
    v_lshlrev_b32 v12, 5, v12
    v_lshl_add_u32 v12, v2, 6, v12
    v_lshl_add_u32 v12, v3, 1, v12
    s_lshl_b32 s25, s4, 9
    s_add_u32 s25, s25, {PBUF}
    v_add_u32 v12, s25, v12
    v_lshl_add_u32 v13, v2, 4, s25""")
    KA=W+124
    A(f"""v_lshlrev_b32 v3, 1, v3
    v_xor_b32 v3, v3, v2
    v_lshlrev_b32 v3, 4, v3
    v_and_b32 v2, 15, v0
    v_lshl_add_u32 v3, v2, 9, v3
    s_lshl_b32 s25, s4, 14
    v_add_u32 v{KA}, s25, v3
    v_xor_b32 v{KA+1}, 64, v{KA}
    v_xor_b32 v{KA+2}, 0x80, v{KA}
    v_xor_b32 v{KA+3}, 0xc0, v{KA}""")
    waitflag(O_WFLAG,1)
    for c in range(8): A(f"ds_read_b128 {w(32+4*c)}, v10 offset:{c*1024}")
    for c in range(1,8):
        A(f"s_waitcnt lgkmcnt({7-c})")
        for r in range(4): A(f"v_add_f32 v{W+32+r}, v{W+32+r}, v{W+32+4*c+r}")
    for r in range(4):
        A(f"v_cvt_pk_bf16_f32 v{W+32+r}, v{W+32+r}, v{W+32+r}")
    for r in range(4):
        A(f"ds_write_b16 v12, v{W+32+r} offset:{16*r}")
    for jj in range(8): A(f"ds_read_b128 {w(4*jj)}, v13 offset:{64*jj}")
    srd(8,52,256)
    A(f"""s_cmp_lg_u32 s4, 0
    s_cbranch_scc1 L_noatom
    s_lshl_b32 s25, s5, 2
    v_mov_b32 v1, 1
    v_mov_b32 v2, s25
    s_mov_b64 exec, 1
    buffer_atomic_add v1, v2, s[8:11], 0 offen sc1
    s_mov_b64 exec, -1
    L_noatom:""")
    stamp(1)
    SF=W+120
    A(f"""s_mov_b32 s28, 0
    s_add_u32 s29, s4, 1
    s_mov_b32 s30, 0x01010101
    s_mov_b32 s31, 0x01010101
    L_k_loop:""")
    waitflag(O_READY,"s29",SLEEP)
    for half in range(2):
        for jj in range(4):
            for ab in range(2):
                A(f"ds_read_b128 {w(32+(jj*2+ab)*4)}, v{KA+jj} offset:{half*256+ab*8192}")
        for jj in range(4):
            for ab in range(2):
                A(f"s_waitcnt lgkmcnt({7-jj*2-ab})")
                c="0" if (half==0 and jj==0) else v(16+4*ab,4)
                A(f"v_mfma_f32_16x16x32_bf16 {v(16+4*ab,4)}, {w(32+(jj*2+ab)*4)}, {w((half*4+jj)*4)}, {c}")
    A(f"""s_add_u32 s29, s29, 8
    s_sub_u32 s25, s29, 1
    s_min_u32 s25, s25, 64""")
    setflag(O_DONE,"s25")
    A("s_nop 3\ns_mov_b64 exec, s[30:31]")
    for k in range(4): A(f"v_cvt_pk_bf16_f32 v{SF+k}, v{16+2*k}, v{17+2*k}")
    A(f"""s_mov_b64 exec, -1
    s_lshl_b64 s[30:31], s[30:31], 1
    s_add_u32 s28, s28, 1
    s_cmp_eq_u32 s28, 1
    s_cbranch_scc1 L_ev1
    s_cmp_eq_u32 s28, 2
    s_cbranch_scc1 L_ev2
    s_cmp_eq_u32 s28, 3
    s_cbranch_scc1 L_ev3
    s_cmp_eq_u32 s28, 5
    s_cbranch_scc1 L_ev5
    s_cmp_lt_u32 s28, 8
    s_cbranch_scc1 L_k_loop
    s_branch L_mid""")
    A("L_ev1:")
    srd(12,44,448*1792*2)
    A(f"""v_lshrrev_b32 v2, 4, v0
    v_and_b32 v3, 7, v0
    v_mul_u32_u24 v2, {14*3584}, v2
    v_lshl_add_u32 v2, v3, 4, v2
    s_mul_i32 s24, s4, {56*3584}
    s_mul_i32 s25, s6, 112
    s_add_u32 s24, s24, s25
    s_mov_b32 s25, s24
    s_mov_b32 exec_lo, 0x007f007f
    s_mov_b32 exec_hi, 0x007f007f""")
    for i in range(14):
        A(f"buffer_load_dwordx4 {w(64+4*i)}, v2, s[12:15], s25 offen {WF}\ns_add_u32 s25, s25, 3584")
    A("""s_mov_b32 s12, s46
    s_mov_b32 s13, s47
    s_mov_b32 exec_lo, 0x7f007f00
    s_mov_b32 exec_hi, 0x7f007f00""")
    for i in range(14):
        A(f"buffer_load_dwordx4 {w(64+4*i)}, v2, s[12:15], s24 offen {WF}\ns_add_u32 s24, s24, 3584")
    A("s_mov_b64 exec, -1\ns_branch L_k_loop")
    A("L_ev2:\ns_waitcnt vmcnt(0)")
    for i in range(14):
        bt=W+32+(i&1)*4
        for r in range(4): A(f"v_and_b32 v{bt+r}, v{4+r}, v{24+i}")
        c="0" if i==0 else v(16,4)
        A(f"s_nop 1\nv_mfma_f32_16x16x32_bf16 {v(16,4)}, {w(64+4*i)}, {v(bt,4)}, {c}")
    srd(12,48,1792*448*2)
    A(f"""v_lshrrev_b32 v2, 4, v0
    v_and_b32 v3, 15, v0
    v_mul_u32_u24 v2, {2*896}, v2
    v_lshl_add_u32 v2, v3, 4, v2
    v_cmp_gt_u32 vcc, 14, v3
    s_mul_i32 s24, s6, {56*896}
    s_mul_i32 s25, s4, {8*896}
    v_mov_b32 v3, 0x40000000
    v_cndmask_b32 v2, v3, v2, vcc
    s_add_u32 s24, s24, s25
    ds_write_b128 v11, v[16:19] offset:8192""")
    setflag(O_WFLAG,2)
    for r in range(2):
        for blk in range(4):
            A(f"buffer_load_dwordx4 {w(64+r*16+blk*4)}, v2, s[12:15], s24 offen offset:{r*896+blk*224} {WF}")
    A("s_branch L_k_loop")
    A("L_ev3:\ns_cmp_lg_u32 s4, 0\ns_cbranch_scc1 L_k_loop")
    waitflag(O_WFLAG,2,SLEEP)
    for c in range(8): A(f"ds_read_b128 {w(32+4*c)}, v10 offset:{8192+c*1024}")
    A("s_waitcnt lgkmcnt(0)")
    for c in range(1,8):
        for r in range(4): A(f"v_add_f32 v{W+32+r}, v{W+32+r}, v{W+32+4*c+r}")
    A(f"""v_lshrrev_b32 v2, 4, v0
    v_and_b32 v2, 1, v2
    v_and_b32 v3, 7, v0
    v_lshlrev_b32 v3, 2, v3
    v_lshl_add_u32 v3, v2, 7, v3
    v_add_u32 v3, {FL+O_H}, v3
    v_cmp_eq_u32 vcc, 0, v2""")
    K0=f2u(-2*0.7978845608028654*1.4426950408889634); K1=f2u(0.044715)
    for r in range(4):
        x=W+32+r; u=W+36; t=W+37
        rnd(x)
        A(f"""v_mov_b32 v{u}, v{x}
        s_nop 1
        v_permlane32_swap_b32 v{x}, v{u}
        s_nop 1
        v_mul_f32 v{t}, v{x}, v{x}
        v_mul_f32 v{t}, {K1}, v{t}
        v_fma_f32 v{t}, v{t}, v{x}, v{x}
        v_mul_f32 v{t}, {K0}, v{t}
        v_exp_f32 v{t}, v{t}
        s_nop 0
        v_add_f32 v{t}, 1.0, v{t}
        v_rcp_f32 v{t}, v{t}
        s_nop 0
        v_mul_f32 v{x}, v{x}, v{t}""")
        rnd(x)
        A(f"v_mul_f32 v{x}, v{x}, v{u}"); rnd(x)
        if r==3: A(f"v_cndmask_b32 v{x}, 0, v{x}, vcc")
    A("s_mov_b32 exec_lo, 0x00ff00ff\ns_mov_b32 exec_hi, 0")
    for r in range(4): A(f"ds_write_b32 v3, v{W+32+r} offset:{32*r}")
    A("s_mov_b64 exec, -1\ns_branch L_k_loop")
    A(f"""L_ev5:
    s_lshl_b32 s25, s5, 2
    v_mov_b32 v2, s25
    L_ev5p:""")
    wd()
    A(f"""buffer_load_dword v1, v2, s[8:11], 0 offen sc1
    s_waitcnt vmcnt(0)
    v_cmp_gt_u32 vcc, 32, v1
    s_cbranch_vccz L_k_loop
    s_sleep 8
    s_branch L_ev5p""")
    A("L_mid:")
    stamp(2)
    for k in range(4):
        A(f"v_lshlrev_b32 v{24+2*k}, 16, v{SF+k}\nv_and_b32 v{25+2*k}, 0xffff0000, v{SF+k}")
    for k in range(8): A(f"v_mov_b32 v{SF+k}, 0")
    A("""v_max3_f32 v3, v24, v25, v26
    v_max3_f32 v3, v3, v27, v28
    v_max3_f32 v3, v3, v29, v30
    v_max_f32 v3, v3, v31""")
    allred("v_max_f32",3,2)
    A(f"s_mov_b64 exec, 1\nds_write_b32 v9, v3 offset:{O_WMAX}\ns_mov_b64 exec, -1")
    setflag(O_WFLAG,3)
    A(f"""v_lshrrev_b32 v2, 4, v0
    v_lshlrev_b32 v13, 4, v2
    v_add_u32 v13, {PBUF}, v13
    v_and_b32 v3, 7, v0
    v_lshl_add_u32 v12, v3, 9, v13
    s_lshl_b32 s25, s4, 6
    v_add_u32 v12, s25, v12""")
    waitflag(O_WFLAG,3)
    A(f"ds_read_b32 v3, v8 offset:{O_WMAX}\ns_waitcnt lgkmcnt(0)")
    allred("v_max_f32",3,2,rows=False,cross=False)
    A(f"""s_mov_b32 s26, {C1}
    v_mul_f32 v2, s26, v3
    v_readfirstlane_b32 s56, v3""")
    for k in range(8): A(f"v_fma_f32 v{24+k}, v{24+k}, s26, -v2")
    for k in range(8): A(f"v_exp_f32 v{24+k}, v{24+k}")
    A("v_add_f32 v3, v24, v25")
    for k in range(2,8): A(f"v_add_f32 v3, v3, v{24+k}")
    for k in range(4): A(f"v_cvt_pk_bf16_f32 v{32+k}, v{24+2*k}, v{25+2*k}")
    A("s_mov_b32 exec_lo, 0x00ff00ff\ns_mov_b32 exec_hi, 0x00ff00ff\nds_write_b128 v12, v[32:35]\ns_mov_b64 exec, -1")
    allred("v_add_f32",3,2)
    A(f"v_mul_f32 v3, 0.5, v3\ns_mov_b64 exec, 1\nds_write_b32 v9, v3 offset:{O_WSUM}\ns_mov_b64 exec, -1")
    setflag(O_WFLAG,4)
    A(f"""v_lshrrev_b32 v2, 4, v0
    s_lshl_b32 s25, s4, 5
    s_add_u32 s25, s25, {FL+O_H}
    v_lshl_add_u32 v3, v2, 3, s25
    ds_read_b64 v[20:21], v3""")
    for k in (16,17,18,19,22,23): A(f"v_mov_b32 v{k}, 0")
    A(f"""v_bfe_u32 v3, v0, 2, 4
    v_and_b32 v1, 7, v3
    s_lshl_b32 s25, s4, 1
    v_xor_b32 v1, s25, v1
    v_lshlrev_b32 v1, 5, v1
    v_lshl_add_u32 v1, v3, 9, v1
    v_and_b32 v3, 3, v0
    v_lshl_add_u32 v11, v3, 3, v1
    v_xor_b32 v12, 32, v11
    v_mov_b32 v15, 1.0""")
    waitflag(O_WFLAG,4)
    A(f"ds_read_b32 v3, v8 offset:{O_WSUM}\ns_waitcnt lgkmcnt(0)")
    allred("v_add_f32",3,2,rows=False,cross=False)
    A(f"""s_nop 0
    v_readfirstlane_b32 s57, v3
    s_cmp_lg_u32 s4, 3
    s_cbranch_scc1 L_noml
    v_mov_b32 v2, s56
    v_min_u32 v3, -2, v3
    v_min_u32 v2, -2, v2
    v_mov_b32 v1, {R_ML}
    s_mov_b64 exec, 1
    buffer_store_dwordx2 v[2:3], v1, s[16:19], 0 offen sc1
    s_mov_b64 exec, -1
    L_noml:
    s_mov_b32 s58, 5
    s_mov_b32 s59, {R_Y}
    s_mov_b32 s28, 64""")
    A("L_gemv:")
    for k in range(8): A(f"v_mul_f32 v{16+k}, v{16+k}, v15")
    for k in range(8): A(f"v_cvt_pk_bf16_f32 v{16+k}, v{16+k}, v{16+k}")
    def b1(s):
        for r in range(4): A(f"v_and_b32 v{32+r}, v{4+r}, v{16+s}")
    def b2(s):
        for r in range(4): A(f"v_and_b32_dpp v{36+r}, v{4+r}, v{16+s} row_ror:8 row_mask:0xf bank_mask:0xf")
    b1(0); b2(0)
    for s in range(8):
        for u in range(2):
            c="0" if s==0 else v(24+4*u,4)
            A(f"v_mfma_f32_16x16x32_bf16 {v(24+4*u,4)}, {w(s*16+u*8)}, v[32:35], {c}")
        if s<7: b1(s+1)
        for u in range(2):
            A(f"v_mfma_f32_16x16x32_bf16 {v(24+4*u,4)}, {w(s*16+u*8+4)}, v[36:39], {v(24+4*u,4)}")
        if s<7: b2(s+1)
    A(f"""s_lshl_b32 s25, s4, 11
    v_add_u32 v2, s25, v10
    v_mov_b32 v1, s58
    s_nop 4
    ds_write_b128 v2, v[24:27]
    ds_write_b128 v2, v[28:31] offset:1024
    s_mov_b64 exec, 1
    ds_write_b32 v9, v1 offset:{O_WFLAG}
    s_mov_b64 exec, -1
    s_cmp_gt_u32 s4, 1
    s_cbranch_scc1 L_nopub
    s_lshl_b32 s25, s4, 10
    v_add_u32 v2, s25, v10
    s_add_u32 s25, s25, s59
    v_lshlrev_b32 v3, 4, v0""")
    waitflag(O_WFLAG,"s58")
    for c in range(6): A(f"ds_read_b128 {v(16+4*c,4)}, v2 offset:{c*2048}")
    A("s_waitcnt lgkmcnt(3)")
    for r in range(4): A(f"v_add_f32 v{16+r}, v{16+r}, v{20+r}")
    for r in range(4): A(f"v_add_f32 v{16+r}, v{16+r}, v{24+r}")
    for c in range(6,8): A(f"ds_read_b128 {v(20+4*(c-6),4)}, v2 offset:{c*2048}")
    A("s_waitcnt lgkmcnt(2)")
    for r in range(4): A(f"v_add_f32 v{28+r}, v{28+r}, v{32+r}")
    for r in range(4): A(f"v_add_f32 v{16+r}, v{16+r}, v{36+r}")
    for r in range(4): A(f"v_add_f32 v{16+r}, v{16+r}, v{28+r}")
    A("s_waitcnt lgkmcnt(0)")
    for r in range(4): A(f"v_add_f32 v{20+r}, v{20+r}, v{24+r}")
    for r in range(4): A(f"v_add_f32 v{16+r}, v{16+r}, v{20+r}")
    for r in range(4): A(f"v_min_u32 v{16+r}, -2, v{16+r}")
    A(f"""buffer_store_dwordx4 v[16:19], v3, s[16:19], s25 offen sc1
    s_nop 1
    L_nopub:
    s_cmp_eq_u32 s58, 6
    s_cbranch_scc1 L_final""")
    srd(12,42,4096*448*2)
    A(f"""v_lshrrev_b32 v2, 4, v0
    v_and_b32 v3, 15, v0
    v_mul_u32_u24 v2, {4*896}, v2
    v_lshl_add_u32 v2, v3, 4, v2
    v_cmp_gt_u32 vcc, 14, v3
    s_lshr_b32 s24, s6, 1
    s_lshl_b32 s24, s24, 3
    s_add_u32 s24, s24, s4
    s_mul_i32 s24, s24, {32*896}
    v_mov_b32 v3, 0x40000000
    v_cndmask_b32 v2, v3, v2, vcc""")
    for a in range(2):
        for r in range(4):
            for blk in range(4):
                A(f"buffer_load_dwordx4 {w((a*4+r)*16+blk*4)}, v2, s[12:15], s24 offen offset:{r*896+blk*224} {WF}")
        if a==0: A(f"s_add_u32 s24, s24, {16*896}")
    for k in range(16,24): A(f"v_mov_b32 v{k}, 0")
    A(f"s_mov_b32 s60, {64+EV}\ns_mov_b32 s27, 0")
    stamp(3)
    A(f"""L_v_loop:
    s_add_u32 s28, s28, 1
    v_add_u32 v2, s27, v11
    v_add_u32 v3, s27, v12
    ds_read_b128 v[32:35], v13""")
    waitflag(O_READY,"s28",SLEEP)
    A(f"""ds_read_b64_tr_b16 v[24:25], v2
    ds_read_b64_tr_b16 v[26:27], v2 offset:8192
    ds_read_b64_tr_b16 v[28:29], v3
    ds_read_b64_tr_b16 v[30:31], v3 offset:8192
    v_mov_b32 v1, s28
    v_add_u32 v13, 64, v13
    s_add_u32 s27, s27, {SLOT}
    s_and_b32 s27, s27, {NS*SLOT-1}
    s_mov_b64 exec, 1
    ds_write_b32 v9, v1 offset:{O_DONE}
    s_mov_b64 exec, -1
    s_waitcnt lgkmcnt(3)
    v_mfma_f32_16x16x32_bf16 v[16:19], v[24:27], v[32:35], v[16:19]
    s_waitcnt lgkmcnt(1)
    v_mfma_f32_16x16x32_bf16 v[20:23], v[28:31], v[32:35], v[20:23]
    s_cmp_lg_u32 s28, s60
    s_cbranch_scc1 L_v_loop
    s_cmp_lg_u32 s28, 128
    s_cbranch_scc1 L_vev""")
    stamp(4)
    A(f"""s_mov_b32 s58, 6
    s_mov_b32 s59, {R_Z}
    s_nop 1
    s_branch L_gemv""")
    A(f"""L_vev:
    s_mov_b32 s60, 128
    s_xor_b32 s24, s7, 1
    s_mul_i32 s24, s24, {RECSZ}
    v_mov_b32 v1, {R_ML}
    L_mlp:""")
    wd()
    A(f"""buffer_load_dwordx2 v[2:3], v1, s[20:23], s24 offen sc1
    s_waitcnt vmcnt(0)
    v_max_u32 v24, v2, v3
    v_cmp_eq_u32 vcc, -1, v24
    s_cbranch_vccnz L_mlp
    v_max_f32 v24, s56, v2
    v_sub_f32 v25, s56, v24
    v_sub_f32 v2, v2, v24
    v_mul_f32 v25, s26, v25
    v_mul_f32 v2, s26, v2
    v_exp_f32 v25, v25
    v_exp_f32 v2, v2
    s_nop 0
    v_mul_f32 v3, v3, v2
    v_fma_f32 v3, v25, s57, v3
    v_rcp_f32 v3, v3
    s_nop 0
    v_mul_f32 v15, v25, v3
    s_cmp_lg_u32 s4, 2
    s_cbranch_scc1 L_v_loop
    s_branch L_gather
    L_final:""")
    stamp(5)
    A(f"""s_cmp_lg_u32 s4, 2
    s_cbranch_scc1 L_exit
    L_gather:
    v_bfe_u32 v2, v0, 2, 4
    v_and_b32 v3, 3, v0
    v_lshlrev_b32 v2, 13, v2
    v_lshl_add_u32 v2, v3, 4, v2
    s_lshl_b32 s24, s5, 18
    s_lshl_b32 s25, s6, 6
    s_add_u32 s24, s24, s25
    s_add_u32 s24, s24, s59
    s_add_u32 s25, s24, {16*RECSZ}
    L_gp:""")
    wd()
    A(f"""buffer_load_dwordx4 v[24:27], v2, s[20:23], s24 offen sc1
    buffer_load_dwordx4 v[28:31], v2, s[20:23], s25 offen sc1
    s_waitcnt vmcnt(0)
    v_max3_u32 v1, v24, v25, v26
    v_max3_u32 v3, v27, v28, v29
    v_max3_u32 v1, v1, v30, v31
    v_max_u32 v1, v1, v3
    v_cmp_eq_u32 vcc, -1, v1
    s_cbranch_vccnz L_gp
    v_add_f32 v24, v24, v28
    v_add_f32 v25, v25, v29
    v_add_f32 v26, v26, v30
    v_add_f32 v27, v27, v31
    s_nop 0
    v_permlane32_swap_b32 v24, v25
    v_permlane32_swap_b32 v26, v27
    s_nop 0
    v_add_f32 v24, v24, v25
    v_add_f32 v26, v26, v27
    s_nop 1
    v_permlane16_swap_b32 v24, v26
    s_nop 1
    v_add_f32 v24, v24, v26
    s_nop 1
    v_add_f32_dpp v24, v24, v24 row_ror:4 row_mask:0xf bank_mask:0xf
    s_nop 1
    v_add_f32_dpp v24, v24, v24 row_ror:8 row_mask:0xf bank_mask:0xf""")
    rnd(24)
    A(f"""s_cmp_lg_u32 s58, 6
    s_cbranch_scc1 L_gy
    v_mul_f32 v24, v24, v14""")
    rnd(24)
    A("""v_and_b32 v1, 0xffff0000, v0
    v_and_b32 v2, 0x0000ffc0, v0
    v_add_f32 v24, v24, v1
    v_lshrrev_b32 v2, 5, v2
    v_cvt_pk_bf16_f32 v24, v24, v24
    buffer_store_short v24, v2, s[8:11], 0 offen
    L_exit:""")
    if PROF:
        stamp(6)
        A(f"""s_waitcnt lgkmcnt(0)
        s_lshl_b32 s24, s2, 8
        s_add_u32 s24, s24, {PROFBASE+32}
        s_cmp_gt_u32 s4, 2
        s_cbranch_scc1 L_end
        s_lshl_b32 s25, s4, 5
        s_add_u32 s24, s24, s25""")
        for k in range(7): A(f"v_mov_b32 v{24+k}, s{64+2*k}")
        A("""v_mov_b32 v1, 0
        s_mov_b64 exec, 1
        buffer_store_dwordx4 v[24:27], v1, s[20:23], s24 offen
        buffer_store_dwordx4 v[28:31], v1, s[20:23], s24 offen offset:16""")
    A("L_end:\ns_endpgm")
    A(f"""L_gy:
    v_mul_f32 v1, {f2u(-1.4426950408889634)}, v24
    v_exp_f32 v1, v1
    s_nop 0
    v_add_f32 v1, 1.0, v1
    v_rcp_f32 v1, v1
    s_nop 0
    v_mul_f32 v14, v24, v1""")
    rnd(14)
    A(f"""v_and_b32 v1, 3, v0
    s_lshl_b32 s24, s6, 2
    v_add_u32 v1, s24, v1
    v_bfe_u32 v2, v0, 4, 1
    v_bfe_u32 v3, v0, 5, 1
    v_lshl_add_u32 v2, v2, 1, v3
    v_bfe_u32 v3, v1, 4, 2
    v_lshl_add_u32 v2, v3, 2, v2
    v_lshrrev_b32 v3, 6, v1
    v_bfe_u32 v24, v1, 3, 1
    v_lshl_add_u32 v3, v3, 1, v24
    v_mul_u32_u24 v3, 112, v3
    v_lshl_add_u32 v3, v2, 3, v3
    v_and_b32 v1, 7, v1
    v_add_u32 v3, v3, v1
    v_cmp_gt_u32 vcc, 14, v2
    v_and_b32 v1, 15, v0
    v_cmp_gt_u32 s[24:25], 4, v1
    s_and_b64 vcc, vcc, s[24:25]
    v_mov_b32 v1, 1023
    v_cndmask_b32 v3, v1, v3, vcc
    v_lshlrev_b32 v2, 1, v3
    s_mul_i32 s24, s5, 896
    s_add_u32 s8, s32, s24
    s_addc_u32 s9, s33, 0
    s_mov_b32 s10, 896
    s_mov_b32 s11, 0x20000
    buffer_load_ushort v1, v2, s[8:11], 0 offen
    s_add_u32 s8, s50, s24
    s_addc_u32 s9, s51, 0
    s_nop 0
    buffer_load_ushort v24, v2, s[8:11], 0 offen
    v_lshl_add_u32 v0, v3, 6, v0
    s_waitcnt vmcnt(0)
    v_lshl_add_u32 v0, v1, 16, v0
    s_branch L_v_loop""")
    L.append(f""".section .rodata,"a"
.p2align 6
.amdhsa_kernel {name}
  .amdhsa_next_free_vgpr 168
  .amdhsa_next_free_sgpr 96
  .amdhsa_accum_offset 168
  .amdhsa_group_segment_fixed_size 0
  .amdhsa_kernarg_size 96
  .amdhsa_user_sgpr_count 2
  .amdhsa_user_sgpr_kernarg_segment_ptr 1
  .amdhsa_system_sgpr_workgroup_id_x 1
.end_amdhsa_kernel""")
    return "\n".join(L)+"\n"
if __name__=="__main__":
    kw=eval("dict(%s)"%(sys.argv[1] if len(sys.argv)>1 else ""))
    sys.stdout.write(gen(**kw))
```

```python
import sys, struct
NAME="recurrent_scan__mha_block_cached__geglu_ffn__decode_kernel"
def f2u(x): return struct.unpack("<I",struct.pack("<f",x))[0]

def gen(D=20, PROF=0, XF="nt", WF="nt", SLEEP=0, WD=0, NOFF=0, NOWO=0, TR=4, D2=48, T2=112, ROT=1, ROTS=14, SFL="sc1", LFL="sc1", YF="sc1 nt", TOUCH=0, SCHED=None, NOQ=0, QW=10, WO0=72, E0=2, NOY=0, name=NAME):
    L=[]
    def A(s):
        for ln in s.split("\n"):
            ln=ln.strip()
            if ln.endswith(" sc1"): ln=ln[:-3]+(SFL if "store" in ln else LFL)
            if ln.endswith(" YF"): ln=ln[:-2]+YF
            if ln: L.append(("" if ln.endswith(":") else "    ")+ln)
    NS=8; SLOT=16384
    PBUF=NS*SLOT; RED=PBUF+4096; FL=RED+16384
    O_READY=0; O_DONE=256; O_QF=288; O_WFLAG=320; O_WMAX=384; O_WSUM=448; O_H=512
    XN=FL+1024; XS=960
    LDS=XN+8*XS
    QX=4096; RECB=262144
    RECSZ=4608; R_Y=0; R_Z=2048; R_ML=4096
    TG=80
    PROFBASE=4<<20
    W=40
    def w(i,n=4): return f"v[{W+i}:{W+i+n-1}]"
    def v(i,n): return f"v[{i}:{i+n-1}]"
    C1=f2u(1.4426950408889634/16.0)
    hdr=open("recurrent_scan__mha_block_cached__geglu_ffn__decode.s.ref").read().split("; Override")[0]
    L.append(hdr.rstrip())
    L.append(f"; @launch grid=(256,1,1) block=(576,1,1) lds={LDS}")
    L.append('.amdgcn_target "amdgcn-amd-amdhsa--gfx950"\n.text')
    L.append(f".globl {name}\n.p2align 8\n.type {name},@function\n{name}:")
    def stamp(k):
        if PROF: A(f"s_memrealtime s[{64+2*k}:{65+2*k}]")
    def srd(d,ptr,size):
        A(f"s_mov_b32 s{d}, s{ptr}\ns_mov_b32 s{d+1}, s{ptr+1}\ns_mov_b32 s{d+2}, {size}\ns_mov_b32 s{d+3}, 0x20000")
    lab=[0]
    def newlab(p):
        lab[0]+=1; return f"L_{p}{lab[0]}"
    def wd():
        if WD: A("s_sub_u32 s61, s61, 1\ns_cbranch_scc1 L_end")
    def setflag(off,val):
        A(f"v_mov_b32 v1, {val}\ns_mov_b64 exec, 1\nds_write_b32 v9, v1 offset:{off}\ns_mov_b64 exec, -1")
    def waitflag(off,val,sleep=0):
        a=newlab("w"); b=newlab("wd")
        A(f"""{a}:
        ds_read_b32 v1, v8 offset:{off}
        s_waitcnt lgkmcnt(0)
        v_cmp_gt_i32 vcc, {val}, v1
        s_cbranch_vccz {b}""")
        if sleep: A(f"s_sleep {sleep}")
        wd()
        A(f"s_branch {a}\n{b}:")
    def allred(op,x,t,rows=True,cross=True):
        for m in ("quad_perm:[1,0,3,2]","quad_perm:[2,3,0,1]","row_half_mirror")+(("row_mirror",) if rows else ()):
            A(f"s_nop 1\n{op}_dpp v{x}, v{x}, v{x} {m} row_mask:0xf bank_mask:0xf")
        if cross:
            for p in ("v_permlane16_swap_b32","v_permlane32_swap_b32"):
                A(f"v_mov_b32 v{t}, v{x}\ns_nop 1\n{p} v{x}, v{t}\ns_nop 1\n{op} v{x}, v{x}, v{t}")
    def tag(x):
        for r in range(4): A(f"v_mov_b32_sdwa v{x+r}, s{TG+r} dst_sel:BYTE_0 dst_unused:UNUSED_PRESERVE src0_sel:BYTE_0")
        A("s_nop 0")
    def untag(x,n,t):
        for r in range(n): A(f"v_xor_b32 v{x+r}, s{TG+(r&3)}, v{x+r}")
        A(f"v_or3_b32 v{t}, v{x}, v{x+1}, v{x+2}")
        for r in range(3,n-1,2): A(f"v_or3_b32 v{t}, v{t}, v{x+r}, v{x+r+1}")
        A(f"v_or_b32 v{t}, v{t}, v{x+n-1}\nv_and_b32 v{t}, 0xff, v{t}\nv_cmp_ne_u32 vcc, 0, v{t}")
    def rnd(x,t=None):
        A(f"v_cvt_pk_bf16_f32 v{x}, v{x}, v{x}\nv_and_b32 v{x}, 0xffff0000, v{x}")

    A(f"""s_cmp_ge_u32 s2, 256
    s_cbranch_scc1 L_end
    s_load_dwordx4 s[36:39], s[0:1], 8
    s_load_dwordx2 s[32:33], s[0:1], 0
    s_load_dwordx4 s[40:43], s[0:1], 24
    s_load_dwordx8 s[44:51], s[0:1], 48
    s_load_dwordx4 s[52:55], s[0:1], 80""")
    stamp(0)
    if WD: A(f"s_mov_b32 s61, {WD}")
    A(f"""v_lshrrev_b32 v1, 6, v0
    v_and_b32 v0, 63, v0
    v_readfirstlane_b32 s3, v1
    s_and_b32 s6, s2, 7
    s_lshl_b32 s6, s6, 2
    s_lshr_b32 s7, s2, 6
    s_add_u32 s6, s6, s7
    s_bfe_u32 s5, s2, 0x30003
    s_lshl_b32 s7, s5, 5
    s_add_u32 s7, s7, s6
    s_cmp_lg_u32 s3, 0
    s_cbranch_scc1 L_worker""")
    A("s_setprio 3")
    A(f"""v_lshlrev_b32 v8, 2, v0
    v_add_u32 v8, {FL}, v8
    v_mov_b32 v1, 0
    ds_write_b32 v8, v1 offset:0
    ds_write_b32 v8, v1 offset:256
    v_and_b32 v9, 7, v0
    v_lshlrev_b32 v9, 2, v9
    v_add_u32 v9, {FL}, v9""")
    A("""v_lshrrev_b32 v1, 5, v0
    v_lshlrev_b32 v2, 4, v0
    v_lshlrev_b32 v1, 5, v1
    v_xor_b32 v4, v2, v1
    v_xor_b32 v5, 64, v4
    v_xor_b32 v6, 0x80, v4
    v_xor_b32 v7, 0xc0, v4
    s_lshl_b32 s24, s7, 20
    s_waitcnt lgkmcnt(0)
    s_add_u32 s8, s36, s24
    s_addc_u32 s9, s37, 0
    s_mov_b32 s10, 0x100000
    s_mov_b32 s11, 0x20000
    s_add_u32 s12, s38, s24
    s_addc_u32 s13, s39, 0""")
    def ld(i): A(f"buffer_load_dwordx4 v{4+i}, s[8:11], s26 offen offset:{i*1024} nt lds")
    for q in range(4):
        if q==0: A(f"s_mul_i32 s26, s2, {ROT}\ns_lshl_b32 s26, s26, {ROTS}\ns_mov_b32 m0, 0\ns_and_b32 s26, s26, 0xfffff")
        else: A(f"s_add_u32 s26, s26, 4096\ns_mov_b32 m0, {q*4096}\ns_and_b32 s26, s26, 0xfffff")
        for i in range(4): ld(i)
        if q==0: A("s_barrier")
    A(f"""s_mov_b32 s25, 1
    s_mov_b32 s27, {SLOT}
    s_mov_b32 s29, 0
    v_mov_b32 v10, 0""")
    if PROF: A("s_mov_b32 s30, 0")
    if PROF: A("s_memrealtime s[70:71]\nv_mov_b32 v20, 0")
    def ldloop(nm,Dd,tend):
        lagi=(Dd+15)%16; lags=(Dd+15)//16
        A(f"""L_ld_loop{nm}:
        s_sub_u32 s28, s25, {NS-1}
        s_waitcnt lgkmcnt(0)""")
        if PROF: A("s_lshr_b32 m0, s25, 1\nv_writelane_b32 v20, s70, m0")
        A(f"""v_cmp_gt_i32 vcc, s28, v10
        s_cbranch_vccz L_ld_go{nm}
        L_ld_spin{nm}:""")
        if PROF: A("s_add_u32 s30, s30, 1")
        wd()
        A(f"""ds_read_b32 v10, v9 offset:{O_DONE}
        s_waitcnt lgkmcnt(0)
        v_cmp_gt_i32 vcc, s28, v10
        s_cbranch_vccnz L_ld_spin{nm}
        L_ld_go{nm}:""")
        for q in range(4):
            A(f"s_add_u32 s26, s26, 4096\ns_add_u32 m0, s27, {q*4096}\ns_and_b32 s26, s26, 0xfffff")
            for i in range(4):
                A(f"s_waitcnt vmcnt({Dd-1})")
                ld(i)
                if q*4+i==lagi:
                    A(f"s_sub_u32 s28, s25, {lags-1}\ns_max_i32 s29, s29, s28\nv_mov_b32 v2, s29\nds_write_b32 v8, v2 offset:{O_READY}")
                if q*4+i==14:
                    A(f"ds_read_b32 v10, v9 offset:{O_DONE}")
                    if PROF: A("s_memrealtime s[70:71]")
        A(f"""s_add_u32 s25, s25, 1
        s_add_u32 s27, s27, {SLOT}
        s_and_b32 s27, s27, {NS*SLOT-1}
        s_cmp_eq_u32 s25, 64
        s_cselect_b32 s8, s12, s8
        s_cselect_b32 s9, s13, s9
        s_cmp_lt_u32 s25, {tend}
        s_cbranch_scc1 L_ld_loop{nm}""")
        return lags
    if SCHED is None: SCHED=[(D,T2),(D2,128)] if D2 else [(D,128)]
    for k,(Dl,te) in enumerate(SCHED): lags=ldloop("abcdefgh"[k],Dl,te)
    for u in range(128-lags,128):
        A(f"v_mov_b32 v2, {u+1}\ns_waitcnt vmcnt({min(Dl-1,16*(127-u))})\nds_write_b32 v8, v2 offset:{O_READY}")
    if PROF:
        stamp(1)
        srd(20,54,0x40000000)
        A(f"""s_waitcnt lgkmcnt(0)
        s_lshl_b32 s24, s2, 8
        s_add_u32 s24, s24, {PROFBASE}
        v_mov_b32 v4, s64
        v_mov_b32 v5, s66
        v_mov_b32 v6, s30
        s_getreg_b32 s31, hwreg(HW_REG_XCC_ID)
        v_mov_b32 v7, s31
        v_mov_b32 v1, 0
        v_lshlrev_b32 v2, 2, v0
        s_add_u32 s25, s24, 65536
        buffer_store_dword v20, v2, s[20:23], s25 offen
        s_mov_b64 exec, 1
        buffer_store_dwordx4 v[4:7], v1, s[20:23], s24 offen""")
    A("s_waitcnt lgkmcnt(0)\ns_endpgm")
    A(f"""L_worker:
    s_sub_u32 s4, s3, 1
    v_mov_b32 v{W+119}, 0
    v_lshlrev_b32 v12, 4, v0
    s_mul_i32 s24, s4, 896
    s_mov_b32 s10, 896
    s_mov_b32 s11, 0x20000
    s_waitcnt lgkmcnt(0)
    s_add_u32 s8, s32, s24
    s_addc_u32 s9, s33, 0
    s_load_dword s84, s[54:55], 0
    buffer_load_dwordx4 v[16:19], v12, s[8:11], 0 offen {XF}
    s_barrier""")
    srd(12,40,448*4096*2)
    A("s_mov_b32 s27, 0\ns_cmp_lg_u32 s4, 7\ns_cbranch_scc1 L_nowq")
    A(f"""v_lshrrev_b32 v2, 1, v0
    v_and_b32 v3, 1, v0
    v_lshlrev_b32 v2, 13, v2
    v_lshl_add_u32 v2, v3, 4, v2
    s_and_b32 s26, s2, 7
    s_lshl_b32 s26, s26, 10
    s_lshr_b32 s27, s2, 3
    s_lshl_b32 s27, s27, 5
    s_mov_b32 m0, {RED}
    s_add_u32 s26, s26, s27""")
    for i in range(14):
        if not NOQ&1: A(f"buffer_load_dwordx4 v2, s[12:15], s26 offen {WF} lds")
        if i<13: A(f"s_mov_b32 m0, {RED+(i+1)*1024}\ns_add_u32 s26, s26, {32*8192}")
    if TOUCH:
        A("s_branch L_notouch\nL_nowq:")
        A(f"""s_lshl_b32 s24, s7, 20
        s_mov_b32 s25, 0x80000
        s_mov_b32 s12, s38
        s_mov_b32 s13, s39
        s_mov_b32 s14, 0x10000000""")
        def sel(c,ptr,size,o0,o1):
            A(f"""s_cmp_eq_u32 s4, {c}
            s_cselect_b32 s12, s{ptr}, s12
            s_cselect_b32 s13, s{ptr+1}, s13
            s_cselect_b32 s14, {size}, s14
            s_cselect_b32 s24, {o0}, s24
            s_cselect_b32 s25, {o1}, s25""")
        A(f"s_mul_i32 s26, s6, 112\ns_mul_i32 s27, s6, {56*896}\ns_lshr_b32 s28, s6, 1\ns_mul_i32 s28, s28, {256*896}\ns_mul_i32 s29, s5, 896")
        sel(1,44,448*1792*2,"s26",447*3584)
        sel(2,46,448*1792*2,"s26",447*3584)
        sel(3,48,448*1792*2,"s27",55*896)
        sel(4,42,448*4096*2,"s28",255*896)
        sel(5,50,8*896,"s29",512)
        sel(6,54,0x40000000,RECB-4096,256*RECSZ+8192)
        A(f"""v_mul_lo_u32 v2, v0, s25
        s_mov_b64 exec, 3
        buffer_load_dword v{W+119}, v2, s[12:15], s24 offen nt
        s_mov_b64 exec, -1
        L_notouch:""")
    else: A("L_nowq:")
    A(f"""s_mul_i32 s24, s7, {RECSZ}
    s_add_u32 s24, s24, {RECB}
    s_add_u32 s16, s54, s24
    s_addc_u32 s17, s55, 0
    s_mov_b32 s18, {RECSZ}
    s_mov_b32 s19, 0x20000""")
    srd(20,54,0x40000000)
    A(f"""v_and_b32 v3, 15, v0
    v_and_b32 v1, 1, v3
    v_cmp_eq_u32 vcc, 1, v1
    v_mov_b32 v14, 0xffff
    v_mov_b32 v15, 0xffff0000
    v_cndmask_b32 v14, v14, v15, vcc
    v_lshrrev_b32 v1, 1, v3""")
    for r in range(4):
        A(f"v_cmp_eq_u32 vcc, {r}, v1\ns_nop 1\nv_cndmask_b32 v{4+r}, 0, v14, vcc")
    A(f"""v_and_b32 v8, 7, v0
    v_lshlrev_b32 v8, 2, v8
    v_add_u32 v8, {FL}, v8
    s_lshl_b32 s25, s4, 2
    s_add_u32 s25, s25, {FL}
    v_mov_b32 v9, s25
    v_add_u32 v10, {RED}, v12
    s_lshl_b32 s25, s4, 10
    v_add_u32 v11, s25, v10
    s_mul_i32 s25, s4, {XS}
    s_add_u32 s25, s25, {XN}
    v_add_u32 v12, s25, v12""")
    for i in range(96,124):
        if i!=119: A(f"v_mov_b32 v{W+i}, 0")
    setflag(O_DONE,"s4")
    KA=W+124
    A(f"""v_lshrrev_b32 v2, 4, v0
    v_and_b32 v3, 7, v0
    v_lshlrev_b32 v13, 4, v2
    v_add_u32 v13, {PBUF}, v13
    v_lshlrev_b32 v3, 1, v3
    v_xor_b32 v3, v3, v2
    v_lshlrev_b32 v3, 4, v3
    v_and_b32 v2, 15, v0
    v_lshl_add_u32 v3, v2, 9, v3
    s_lshl_b32 s25, s4, 14
    v_add_u32 v{KA}, s25, v3
    v_xor_b32 v{KA+1}, 64, v{KA}
    v_xor_b32 v{KA+2}, 0x80, v{KA}
    v_xor_b32 v{KA+3}, 0xc0, v{KA}""")
    A("""s_cmp_lg_u32 s4, 7
    s_cbranch_scc1 L_xw0
    s_waitcnt vmcnt(""" + ("0" if NOQ&1 else "14") + """)
    s_branch L_xw1
    L_xw0:
    s_waitcnt vmcnt(""" + str(1 if TOUCH else 0) + """)
    L_xw1:""")
    for k in range(4):
        A(f"v_lshlrev_b32 v{32+2*k}, 16, v{16+k}\nv_and_b32 v{33+2*k}, 0xffff0000, v{16+k}")
    A("v_add_f32 v1, v32, v33")
    for k in range(2,8): A(f"v_add_f32 v1, v1, v{32+k}")
    allred("v_add_f32",1,2)
    A(f"v_mul_f32 v1, {f2u(1.0/448)}, v1\nv_mov_b32 v3, 0")
    for k in range(8): A(f"v_sub_f32 v2, v{32+k}, v1\nv_fmac_f32 v3, v2, v2")
    A("v_cmp_gt_u32 vcc, 56, v0\ns_nop 1\nv_cndmask_b32 v3, 0, v3, vcc")
    allred("v_add_f32",3,2)
    A(f"v_mul_f32 v3, {f2u(1.0/448)}, v3")
    rnd(1); rnd(3)
    A(f"v_add_f32 v3, {f2u(1e-5)}, v3"); rnd(3)
    A("v_sqrt_f32 v3, v3\ns_nop 0"); rnd(3)
    A("v_rcp_f32 v2, v3\ns_nop 0")
    A("v_fma_f32 v14, -v3, v2, 1.0\nv_fmac_f32 v2, v14, v2")
    for k in range(8): A(f"v_sub_f32 v{32+k}, v{32+k}, v1")
    for k in range(8): rnd(32+k)
    for k in range(8): A(f"v_mul_f32 v{24+k}, v{32+k}, v2")
    for k in range(8): A(f"v_fma_f32 v{32+k}, -v{24+k}, v3, v{32+k}")
    for k in range(8): A(f"v_fmac_f32 v{24+k}, v{32+k}, v2")
    for k in range(4): A(f"v_cvt_pk_bf16_f32 v{16+k}, v{24+2*k}, v{25+2*k}")
    A(f"""s_mov_b32 exec_hi, 0x00ffffff
    ds_write_b128 v12, v[16:19]
    s_mov_b32 exec_hi, -1
    s_waitcnt lgkmcnt(0)
    s_add_u32 s84, s84, 0x01010101
    s_and_b32 s{TG}, s84, 0xff
    s_bfe_u32 s{TG+1}, s84, 0x80008
    s_bfe_u32 s{TG+2}, s84, 0x80010
    s_lshr_b32 s{TG+3}, s84, 24""")
    setflag(O_WFLAG,1)
    A("s_cmp_lg_u32 s4, 7\ns_cbranch_scc1 L_noq")
    A(f"""v_lshrrev_b32 v2, 4, v0
    v_and_b32 v3, 15, v0
    v_lshlrev_b32 v14, 8, v2
    v_lshl_add_u32 v14, v3, 3, v14
    v_add_u32 v14, {RED}, v14
    v_and_b32 v1, 7, v0
    v_mul_u32_u24 v15, {XS}, v1
    v_lshl_add_u32 v15, v2, 4, v15
    v_add_u32 v15, {XN}, v15
    v_lshlrev_b32 v3, 14, v3
    v_lshl_add_u32 v2, v2, 4, v3
    s_and_b32 s24, s2, 7
    s_lshl_b32 s24, s24, 11
    s_lshr_b32 s25, s2, 3
    s_lshl_b32 s25, s25, 6
    s_add_u32 s24, s24, s25
    s_add_u32 s24, s24, {QX}
    s_lshr_b32 s25, s7, 1
    s_lshl_b32 s25, s25, 10
    s_add_u32 s25, s25, {QX}
    v_lshlrev_b32 v3, 4, v0""")
    waitflag(O_WFLAG,1)
    for st in range(14): A(f"ds_read_b128 {w(st*4)}, v15 offset:{st*64}")
    A("s_waitcnt vmcnt(0) lgkmcnt(0)")
    def trr(st):
        A(f"ds_read_b64_tr_b16 {w(56+st*4,2)}, v14 offset:{st*1024}\nds_read_b64_tr_b16 {w(58+st*4,2)}, v14 offset:{st*1024+128}")
    for st in range(7): trr(st)
    for st in range(14):
        A(f"s_waitcnt lgkmcnt({min(12,2*(13-st))})")
        c="0" if st<2 else v(16+4*(st&1),4)
        A(f"v_mfma_f32_16x16x32_bf16 {v(16+4*(st&1),4)}, {w(56+st*4)}, {w(st*4)}, {c}")
        if st+7<14: trr(st+7)
    A("s_nop 7")
    for r in range(4): A(f"v_add_f32 v{16+r}, v{16+r}, v{20+r}")
    for r in range(4): rnd(16+r)
    for r in range(4): A(f"v_or_b32 v{16+r}, s{TG+r}, v{16+r}")
    A(f"""s_mov_b32 exec_lo, 0x00ff00ff
    s_mov_b32 exec_hi, 0x00ff00ff
    {"" if NOQ&2 else "buffer_store_dwordx4 v[16:19], v2, s[20:23], s24 offen sc1"}
    s_mov_b64 exec, -1
    v_lshlrev_b32 v14, 3, v0
    v_add_u32 v14, {PBUF}, v14
    s_mov_b32 s26, 0x07060302
    s_mov_b32 s27, s25
    L_noq:""")
    SF=W+120
    A(f"""s_mov_b32 s28, 0
    s_add_u32 s29, s4, 1
    s_mov_b32 s30, 0x01010101
    s_mov_b32 s31, 0x01010101""")
    waitflag(O_READY,"s29",SLEEP)
    for half in range(2):
        for jj in range(4):
            for ab in range(2):
                A(f"ds_read_b128 {w(32+half*32+(jj*2+ab)*4)}, v{KA+jj} offset:{half*256+ab*8192}")
        if half==0: A("s_waitcnt lgkmcnt(4)")
    A("s_add_u32 s25, s4, 8")
    setflag(O_DONE,"s25")
    A("s_cmp_lg_u32 s4, 7\ns_cbranch_scc1 L_noq2")
    if QW: waitflag(O_READY,QW,SLEEP)
    A("L_qp:")
    wd()
    if not NOQ&4: A("buffer_load_dwordx4 v[20:23], v3, s[20:23], s27 offen sc1\ns_waitcnt vmcnt(0)")
    untag(20,4,1)
    if NOQ:
        for r in range(4): A(f"v_mov_b32 v{20+r}, 0")
    A(f"""{"" if NOQ&6 else "s_cbranch_vccnz L_qp"}
    v_perm_b32 v20, v21, v20, s26
    v_perm_b32 v21, v23, v22, s26
    v_mov_b32 v1, 1
    ds_write_b64 v14, v[20:21]
    ds_write_b32 v8, v1 offset:{O_QF}
    L_noq2:""")
    waitflag(O_QF,1,SLEEP)
    stamp(1)
    for jj in range(8): A(f"ds_read_b128 {w(4*jj)}, v13 offset:{64*jj}")
    A("s_waitcnt lgkmcnt(0)")
    for half in range(2):
        for jj in range(4):
            for ab in range(2):
                c="0" if (half==0 and jj==0) else v(16+4*ab,4)
                A(f"v_mfma_f32_16x16x32_bf16 {v(16+4*ab,4)}, {w(32+half*32+(jj*2+ab)*4)}, {w((half*4+jj)*4)}, {c}")
    A("s_branch L_k_tail\nL_k_loop:")
    waitflag(O_READY,"s29",SLEEP)
    for half in range(2):
        for jj in range(4):
            for ab in range(2):
                A(f"ds_read_b128 {w(32+(jj*2+ab)*4)}, v{KA+jj} offset:{half*256+ab*8192}")
        for jj in range(4):
            for ab in range(2):
                A(f"s_waitcnt lgkmcnt({7-jj*2-ab})")
                c="0" if (half==0 and jj==0) else v(16+4*ab,4)
                A(f"v_mfma_f32_16x16x32_bf16 {v(16+4*ab,4)}, {w(32+(jj*2+ab)*4)}, {w((half*4+jj)*4)}, {c}")
    A("L_k_tail:")
    A(f"""s_add_u32 s29, s29, 8
    s_sub_u32 s25, s29, 1
    s_min_u32 s25, s25, 64""")
    setflag(O_DONE,"s25")
    A("s_nop 3\ns_mov_b64 exec, s[30:31]")
    for k in range(4): A(f"v_cvt_pk_bf16_f32 v{SF+k}, v{16+2*k}, v{17+2*k}")
    A(f"""s_mov_b64 exec, -1
    s_lshl_b64 s[30:31], s[30:31], 1
    s_add_u32 s28, s28, 1
""")
    for e in range(1,5): A(f"s_cmp_eq_u32 s28, {e+E0-1}\ns_cbranch_scc1 L_ev1_{e}")
    A(f"""s_cmp_eq_u32 s28, {E0+4}
    s_cbranch_scc1 L_ev2
    s_cmp_eq_u32 s28, {E0+5}
    s_cbranch_scc1 L_ev3
    s_cmp_lt_u32 s28, 8
    s_cbranch_scc1 L_k_loop
    s_branch L_mid""")
    A("L_ev1_1:")
    srd(12,44,448*1792*2)
    A(f"""s_cmp_lt_u32 s6, 28
    s_cselect_b32 s14, s14, 0
    v_lshrrev_b32 v2, 4, v0
    v_and_b32 v3, 7, v0
    v_mul_u32_u24 v2, {14*3584}, v2
    v_lshl_add_u32 v2, v3, 4, v2
    s_mul_i32 s24, s4, {56*3584}
    s_lshl_b32 s25, s6, 7
    s_add_u32 s24, s24, s25
    s_mov_b32 s27, s24""")
    for e in range(4):
        if e and TR: A(f"L_ev1_{e+1}:")
        if e==2: A("s_mov_b32 s12, s46\ns_mov_b32 s13, s47")
        m="0x00ff00ff" if e<2 else "0xff00ff00"
        sr=27 if e<2 else 24
        A(f"s_mov_b32 exec_lo, {m}\ns_mov_b32 exec_hi, {m}")
        for i in range(7*(e&1),7*(e&1)+7):
            if not NOFF: A(f"buffer_load_dwordx4 {w(64+4*i)}, v2, s[12:15], s{sr} offen {WF}\ns_add_u32 s{sr}, s{sr}, 3584")
        if TR or e==3: A("s_mov_b64 exec, -1\ns_branch L_k_loop")
    A(f"""L_ev2:
    v_lshrrev_b32 v2, 4, v0
    s_mul_i32 s24, s5, {XS}
    s_mul_i32 s25, s4, 112
    s_add_u32 s24, s24, s25
    s_add_u32 s24, s24, {XN}
    v_mul_u32_u24 v2, 28, v2
    v_add_u32 v2, s24, v2""")
    for k in range(7): A(f"ds_read_b32 v{24+k}, v2 offset:{4*k}")
    A("s_mov_b32 s24, 0x01000100\ns_mov_b32 s25, 0x03020302\ns_waitcnt lgkmcnt(0)")
    for k in range(6,-1,-1):
        A(f"v_perm_b32 v{25+2*k}, v{24+k}, v{24+k}, s25\nv_perm_b32 v{24+2*k}, v{24+k}, v{24+k}, s24")
    A("s_waitcnt vmcnt(0)")
    for i in range(14):
        bt=W+32+(i&1)*4
        for r in range(4): A(f"v_and_b32 v{bt+r}, v{4+r}, v{24+i}")
        c="0" if i==0 else v(16,4)
        A(f"s_nop 1\nv_mfma_f32_16x16x32_bf16 {v(16,4)}, {w(64+4*i)}, {v(bt,4)}, {c}")
    srd(12,48,1792*448*2)
    A(f"""v_lshrrev_b32 v2, 4, v0
    v_and_b32 v3, 15, v0
    v_mul_u32_u24 v2, {2*896}, v2
    v_lshl_add_u32 v2, v3, 4, v2
    v_cmp_gt_u32 vcc, 8, v3
    s_mul_i32 s24, s6, {64*896}
    s_mul_i32 s25, s4, {8*896}
    v_mov_b32 v3, 0x40000000
    v_cndmask_b32 v3, v3, v2, vcc
    s_add_u32 s24, s24, s25
    ds_write_b128 v11, v[16:19] offset:8192""")
    setflag(O_WFLAG,2)
    for r in range(2):
        for blk in range(4):
            if not NOFF: A(f"buffer_load_dwordx4 {w(64+r*16+blk*4)}, v{3 if blk==3 else 2}, s[12:15], s24 offen offset:{r*896+blk*256} {WF}")
    A("s_branch L_k_loop")
    A("L_ev3:\ns_cmp_lg_u32 s4, 0\ns_cbranch_scc1 L_k_loop")
    waitflag(O_WFLAG,2,SLEEP)
    for c in range(8): A(f"ds_read_b128 {w(32+4*c)}, v10 offset:{8192+c*1024}")
    A("s_waitcnt lgkmcnt(0)")
    for c in range(1,8):
        for r in range(4): A(f"v_add_f32 v{W+32+r}, v{W+32+r}, v{W+32+4*c+r}")
    A(f"""v_lshrrev_b32 v2, 4, v0
    v_and_b32 v2, 1, v2
    v_and_b32 v3, 7, v0
    v_lshlrev_b32 v3, 2, v3
    v_lshl_add_u32 v3, v2, 7, v3
    v_add_u32 v3, {FL+O_H}, v3""")
    K0=f2u(-2*0.7978845608028654*1.4426950408889634); K1=f2u(0.044715)
    for r in range(4):
        x=W+32+r; u=W+36; t=W+37
        rnd(x)
        A(f"""v_mov_b32 v{u}, v{x}
        s_nop 1
        v_permlane32_swap_b32 v{x}, v{u}
        s_nop 1
        v_mul_f32 v{t}, v{x}, v{x}
        v_mul_f32 v{t}, {K1}, v{t}
        v_fma_f32 v{t}, v{t}, v{x}, v{x}
        v_mul_f32 v{t}, {K0}, v{t}
        v_exp_f32 v{t}, v{t}
        s_nop 0
        v_add_f32 v{t}, 1.0, v{t}
        v_rcp_f32 v{t}, v{t}
        s_nop 0
        v_mul_f32 v{x}, v{x}, v{t}""")
        rnd(x)
        A(f"v_mul_f32 v{x}, v{x}, v{u}"); rnd(x)
    A("s_mov_b32 exec_lo, 0x00ff00ff\ns_mov_b32 exec_hi, 0")
    for r in range(4): A(f"ds_write_b32 v3, v{W+32+r} offset:{32*r}")
    A("s_mov_b64 exec, -1\ns_branch L_k_loop")
    A("L_mid:")
    stamp(2)
    A("s_waitcnt vmcnt(0)")
    for k in range(4):
        A(f"v_lshlrev_b32 v{24+2*k}, 16, v{SF+k}\nv_and_b32 v{25+2*k}, 0xffff0000, v{SF+k}")
    for k in range(8): A(f"v_mov_b32 v{SF+k}, 0")
    A("""v_max3_f32 v3, v24, v25, v26
    v_max3_f32 v3, v3, v27, v28
    v_max3_f32 v3, v3, v29, v30
    v_max_f32 v3, v3, v31""")
    allred("v_max_f32",3,2)
    A(f"s_mov_b64 exec, 1\nds_write_b32 v9, v3 offset:{O_WMAX}\ns_mov_b64 exec, -1")
    setflag(O_WFLAG,3)
    A(f"""v_lshrrev_b32 v2, 4, v0
    v_lshlrev_b32 v13, 4, v2
    v_add_u32 v13, {PBUF}, v13
    v_and_b32 v3, 7, v0
    v_lshl_add_u32 v12, v3, 9, v13
    s_lshl_b32 s25, s4, 6
    v_add_u32 v12, s25, v12""")
    waitflag(O_WFLAG,3)
    A(f"ds_read_b32 v3, v8 offset:{O_WMAX}\ns_waitcnt lgkmcnt(0)")
    allred("v_max_f32",3,2,rows=False,cross=False)
    A(f"""s_mov_b32 s26, {C1}
    v_mul_f32 v2, s26, v3
    v_readfirstlane_b32 s56, v3""")
    for k in range(8): A(f"v_fma_f32 v{24+k}, v{24+k}, s26, -v2")
    for k in range(8): A(f"v_exp_f32 v{24+k}, v{24+k}")
    A("v_add_f32 v3, v24, v25")
    for k in range(2,8): A(f"v_add_f32 v3, v3, v{24+k}")
    for k in range(4): A(f"v_cvt_pk_bf16_f32 v{32+k}, v{24+2*k}, v{25+2*k}")
    A("s_mov_b32 exec_lo, 0x00ff00ff\ns_mov_b32 exec_hi, 0x00ff00ff\nds_write_b128 v12, v[32:35]\ns_mov_b64 exec, -1")
    allred("v_add_f32",3,2)
    A(f"v_mul_f32 v3, 0.5, v3\ns_mov_b64 exec, 1\nds_write_b32 v9, v3 offset:{O_WSUM}\ns_mov_b64 exec, -1")
    setflag(O_WFLAG,4)
    A(f"""v_lshrrev_b32 v2, 4, v0
    s_lshl_b32 s25, s4, 5
    s_add_u32 s25, s25, {FL+O_H}
    v_lshl_add_u32 v3, v2, 3, s25
    ds_read_b64 v[20:21], v3""")
    for k in (16,17,18,19,22,23): A(f"v_mov_b32 v{k}, 0")
    A(f"""v_bfe_u32 v3, v0, 2, 4
    v_and_b32 v1, 7, v3
    s_lshl_b32 s25, s4, 1
    v_xor_b32 v1, s25, v1
    v_lshlrev_b32 v1, 5, v1
    v_lshl_add_u32 v1, v3, 9, v1
    v_and_b32 v3, 3, v0
    v_lshl_add_u32 v11, v3, 3, v1
    v_xor_b32 v12, 32, v11
    v_mov_b32 v15, 1.0""")
    waitflag(O_WFLAG,4)
    A(f"ds_read_b32 v3, v8 offset:{O_WSUM}\ns_waitcnt lgkmcnt(0)")
    allred("v_add_f32",3,2,rows=False,cross=False)
    A(f"""s_nop 0
    v_readfirstlane_b32 s57, v3
    s_cmp_lg_u32 s4, 3
    s_cbranch_scc1 L_noml
    v_mov_b32 v24, s56
    v_mov_b32 v25, v3
    v_mov_b32 v26, 0
    v_mov_b32 v27, 0
    v_mov_b32 v1, {R_ML}""")
    tag(24)
    A(f"""s_mov_b64 exec, 1
    buffer_store_dwordx4 v[24:27], v1, s[16:19], 0 offen YF
    s_mov_b64 exec, -1
    L_noml:
    s_mov_b32 s58, 5
    s_mov_b32 s59, {R_Y}
    s_mov_b32 s28, 64""")
    A("L_gemv:")
    for k in range(8): A(f"v_mul_f32 v{16+k}, v{16+k}, v15")
    for k in range(8): A(f"v_cvt_pk_bf16_f32 v{16+k}, v{16+k}, v{16+k}")
    def b1(s):
        for r in range(4): A(f"v_and_b32 v{32+r}, v{4+r}, v{16+s}")
    def b2(s):
        for r in range(4): A(f"v_and_b32_dpp v{36+r}, v{4+r}, v{16+s} row_ror:8 row_mask:0xf bank_mask:0xf")
    b1(0); b2(0)
    for s in range(8):
        for u in range(2):
            c="0" if s==0 else v(24+4*u,4)
            A(f"v_mfma_f32_16x16x32_bf16 {v(24+4*u,4)}, {w(s*16+u*8)}, v[32:35], {c}")
        if s<7: b1(s+1)
        for u in range(2):
            A(f"v_mfma_f32_16x16x32_bf16 {v(24+4*u,4)}, {w(s*16+u*8+4)}, v[36:39], {v(24+4*u,4)}")
        if s<7: b2(s+1)
    A(f"""s_lshl_b32 s25, s4, 11
    v_add_u32 v2, s25, v10
    v_mov_b32 v1, s58
    s_nop 4
    ds_write_b128 v2, v[24:27]
    ds_write_b128 v2, v[28:31] offset:1024
    s_mov_b64 exec, 1
    ds_write_b32 v9, v1 offset:{O_WFLAG}
    s_mov_b64 exec, -1
    s_cmp_gt_u32 s4, 1
    s_cbranch_scc1 L_nopub
    s_lshl_b32 s25, s4, 10
    v_add_u32 v2, s25, v10
    s_add_u32 s25, s25, s59
    v_lshlrev_b32 v3, 4, v0""")
    waitflag(O_WFLAG,"s58")
    for c in range(6): A(f"ds_read_b128 {v(16+4*c,4)}, v2 offset:{c*2048}")
    A("s_waitcnt lgkmcnt(3)")
    for r in range(4): A(f"v_add_f32 v{16+r}, v{16+r}, v{20+r}")
    for r in range(4): A(f"v_add_f32 v{16+r}, v{16+r}, v{24+r}")
    for c in range(6,8): A(f"ds_read_b128 {v(20+4*(c-6),4)}, v2 offset:{c*2048}")
    A("s_waitcnt lgkmcnt(2)")
    for r in range(4): A(f"v_add_f32 v{28+r}, v{28+r}, v{32+r}")
    for r in range(4): A(f"v_add_f32 v{16+r}, v{16+r}, v{36+r}")
    for r in range(4): A(f"v_add_f32 v{16+r}, v{16+r}, v{28+r}")
    A("s_waitcnt lgkmcnt(0)")
    for r in range(4): A(f"v_add_f32 v{20+r}, v{20+r}, v{24+r}")
    for r in range(4): A(f"v_add_f32 v{16+r}, v{16+r}, v{20+r}")
    tag(16)
    A(f"""s_cmp_eq_u32 s58, 6
    s_cbranch_scc0 L_puby
    buffer_store_dwordx4 v[16:19], v3, s[16:19], s25 offen sc1
    s_branch L_final
    L_puby:
    buffer_store_dwordx4 v[16:19], v3, s[16:19], s25 offen YF
    s_nop 1
    L_nopub:
    s_cmp_eq_u32 s58, 6
    s_cbranch_scc1 L_final""")
    srd(12,42,4096*448*2)
    A(f"""v_lshrrev_b32 v2, 4, v0
    v_and_b32 v3, 15, v0
    v_mul_u32_u24 v2, {4*896}, v2
    v_lshl_add_u32 v2, v3, 4, v2
    v_cmp_gt_u32 vcc, 8, v3
    s_lshr_b32 s24, s6, 1
    s_lshl_b32 s24, s24, 3
    s_add_u32 s24, s24, s4
    s_mul_i32 s24, s24, {32*896}
    v_mov_b32 v3, 0x40000000
    v_cndmask_b32 v38, v3, v2, vcc""")
    def wold(a,r):
        for blk in range(4):
            if not NOWO: A(f"buffer_load_dwordx4 {w((a*4+r)*16+blk*4)}, v{38 if blk==3 else 39}, s[12:15], s62 offen offset:{r*896+blk*256} {WF}")
        if a==0 and r==3: A(f"s_add_u32 s62, s62, {16*896}")
    A("v_mov_b32 v39, v2\ns_mov_b32 s62, s24")
    for k in range(16,24): A(f"v_mov_b32 v{k}, 0")
    assert WO0+9*TR<=127
    A(f"s_mul_i32 s60, s4, {TR}\ns_lshr_b32 s60, s60, 3\ns_add_u32 s60, s60, {WO0}\ns_mov_b32 s27, 0\ns_mov_b32 s63, 0")
    stamp(3)
    A(f"""L_v_loop:
    s_add_u32 s28, s28, 1
    v_add_u32 v2, s27, v11
    v_add_u32 v3, s27, v12
    ds_read_b128 v[32:35], v13""")
    waitflag(O_READY,"s28",SLEEP)
    A(f"""ds_read_b64_tr_b16 v[24:25], v2
    ds_read_b64_tr_b16 v[26:27], v2 offset:8192
    ds_read_b64_tr_b16 v[28:29], v3
    ds_read_b64_tr_b16 v[30:31], v3 offset:8192
    v_mov_b32 v1, s28
    v_add_u32 v13, 64, v13
    s_add_u32 s27, s27, {SLOT}
    s_and_b32 s27, s27, {NS*SLOT-1}
    s_mov_b64 exec, 1
    ds_write_b32 v9, v1 offset:{O_DONE}
    s_mov_b64 exec, -1
    s_waitcnt lgkmcnt(3)
    v_mfma_f32_16x16x32_bf16 v[16:19], v[24:27], v[32:35], v[16:19]
    s_waitcnt lgkmcnt(1)
    v_mfma_f32_16x16x32_bf16 v[20:23], v[28:31], v[32:35], v[20:23]
    s_cmp_lg_u32 s28, s60
    s_cbranch_scc1 L_v_loop
    s_cmp_lg_u32 s28, 128
    s_cbranch_scc1 L_vev""")
    stamp(4)
    A(f"""s_mov_b32 s58, 6
    s_mov_b32 s59, {R_Z}
    s_nop 1
    s_branch L_gemv""")
    A("L_vev:")
    if TR:
        A(f"s_add_u32 s60, s60, {TR}\ns_add_u32 s63, s63, 1")
        for e in range(8): A(f"s_cmp_eq_u32 s63, {e+1}\ns_cbranch_scc1 L_wo{e}")
        A("s_branch L_vev2")
        for e in range(8):
            A(f"L_wo{e}:"); wold(e>>2,e&3); A("s_branch L_v_loop")
        A("L_vev2:")
    A(f"""s_mov_b32 s60, 128
    s_xor_b32 s24, s7, 1
    s_mul_i32 s24, s24, {RECSZ}
    v_mov_b32 v36, {RECB+R_ML}
    L_mlp:""")
    wd()
    A("buffer_load_dwordx4 v[28:31], v36, s[20:23], s24 offen YF\ns_waitcnt vmcnt(0)")
    untag(28,4,1)
    A(f"""s_cbranch_vccnz L_mlp
    v_mov_b32 v2, v28
    v_mov_b32 v3, v29
    v_max_f32 v24, s56, v2
    v_sub_f32 v25, s56, v24
    v_sub_f32 v2, v2, v24
    v_mul_f32 v25, s26, v25
    v_mul_f32 v2, s26, v2
    v_exp_f32 v25, v25
    v_exp_f32 v2, v2
    s_nop 0
    v_mul_f32 v3, v3, v2
    v_fma_f32 v3, v25, s57, v3
    v_rcp_f32 v3, v3
    s_nop 0
    v_mul_f32 v15, v25, v3
    s_cmp_lg_u32 s4, 2
    s_cbranch_scc1 L_v_loop
    s_branch L_gather
    L_final:""")
    stamp(5)
    A(f"""s_cmp_lg_u32 s4, 2
    s_cbranch_scc1 L_exit
    L_gather:
    v_bfe_u32 v2, v0, 2, 4
    v_and_b32 v3, 3, v0
    v_mul_u32_u24 v2, {RECSZ}, v2
    v_lshl_add_u32 v2, v3, 4, v2
    s_mul_i32 s24, s5, {32*RECSZ}
    s_add_u32 s24, s24, {RECB}
    s_lshl_b32 s25, s6, 6
    s_add_u32 s24, s24, s25
    s_add_u32 s24, s24, s59
    s_add_u32 s25, s24, {16*RECSZ}
    L_gp:""")
    wd()
    A(f"""s_cmp_eq_u32 s58, 6
    s_cbranch_scc0 L_gpy
    buffer_load_dwordx4 v[24:27], v2, s[20:23], s24 offen sc1
    buffer_load_dwordx4 v[28:31], v2, s[20:23], s25 offen sc1
    L_gpw:
    s_waitcnt vmcnt(0)
""")
    untag(24,8,1)
    A(f"""s_cbranch_vccnz L_gp
    v_add_f32 v24, v24, v28
    v_add_f32 v25, v25, v29
    v_add_f32 v26, v26, v30
    v_add_f32 v27, v27, v31
    s_nop 0
    v_permlane32_swap_b32 v24, v25
    v_permlane32_swap_b32 v26, v27
    s_nop 0
    v_add_f32 v24, v24, v25
    v_add_f32 v26, v26, v27
    s_nop 1
    v_permlane16_swap_b32 v24, v26
    s_nop 1
    v_add_f32 v24, v24, v26
    s_nop 1
    v_add_f32_dpp v24, v24, v24 row_ror:4 row_mask:0xf bank_mask:0xf
    s_nop 1
    v_add_f32_dpp v24, v24, v24 row_ror:8 row_mask:0xf bank_mask:0xf""")
    rnd(24)
    A(f"""s_cmp_lg_u32 s58, 6
    s_cbranch_scc1 L_gy
    v_mul_f32 v24, v24, v14""")
    rnd(24)
    A("""v_and_b32 v1, 0xffff0000, v0
    v_and_b32 v2, 0x0000ffc0, v0
    v_add_f32 v24, v24, v1
    v_lshrrev_b32 v2, 5, v2
    v_cvt_pk_bf16_f32 v24, v24, v24
    buffer_store_short v24, v2, s[8:11], 0 offen
    s_cmp_lg_u32 s2, 0
    s_cbranch_scc1 L_exit
    v_mov_b32 v1, s84
    v_mov_b32 v2, 0
    s_mov_b64 exec, 1
    buffer_store_dword v1, v2, s[20:23], 0 offen sc1
    s_mov_b64 exec, -1
    L_exit:""")
    if PROF:
        stamp(6)
        A(f"""s_waitcnt lgkmcnt(0)
        s_lshl_b32 s24, s2, 8
        s_add_u32 s24, s24, {PROFBASE+32}
        s_cmp_gt_u32 s4, 2
        s_cbranch_scc1 L_end
        s_lshl_b32 s25, s4, 5
        s_add_u32 s24, s24, s25""")
        for k in range(7): A(f"v_mov_b32 v{24+k}, s{64+2*k}")
        A("""v_mov_b32 v1, 0
        s_mov_b64 exec, 1
        buffer_store_dwordx4 v[24:27], v1, s[20:23], s24 offen
        buffer_store_dwordx4 v[28:31], v1, s[20:23], s24 offen offset:16""")
    A("L_end:\ns_endpgm")
    A("""L_gpy:
    buffer_load_dwordx4 v[24:27], v2, s[20:23], s24 offen YF
    buffer_load_dwordx4 v[28:31], v2, s[20:23], s25 offen YF
    s_branch L_gpw""")
    A(f"""L_gy:
    v_mul_f32 v1, {f2u(-1.4426950408889634)}, v24
    v_exp_f32 v1, v1
    s_nop 0
    v_add_f32 v1, 1.0, v1
    v_rcp_f32 v1, v1
    s_nop 0
    v_mul_f32 v14, v24, v1""")
    rnd(14)
    A(f"""v_and_b32 v1, 3, v0
    s_lshl_b32 s24, s6, 2
    v_add_u32 v1, s24, v1
    v_bfe_u32 v2, v0, 4, 1
    v_bfe_u32 v3, v0, 5, 1
    v_lshl_add_u32 v2, v2, 1, v3
    v_bfe_u32 v3, v1, 4, 2
    v_lshl_add_u32 v2, v3, 2, v2
    v_lshrrev_b32 v3, 6, v1
    v_bfe_u32 v24, v1, 3, 1
    v_lshl_add_u32 v3, v3, 1, v24
    v_lshlrev_b32 v3, 7, v3
    v_lshl_add_u32 v3, v2, 3, v3
    v_and_b32 v1, 7, v1
    v_add_u32 v3, v3, v1
    v_and_b32 v1, 15, v0
    v_cmp_gt_u32 vcc, 4, v1
    v_mov_b32 v1, 1023
    s_nop 0
    v_cndmask_b32 v3, v1, v3, vcc
    v_lshlrev_b32 v2, 1, v3
    s_mul_i32 s24, s5, 896
    s_add_u32 s8, s32, s24
    s_addc_u32 s9, s33, 0
    s_mov_b32 s10, 896
    s_mov_b32 s11, 0x20000
    buffer_load_ushort v1, v2, s[8:11], 0 offen nt
    s_add_u32 s8, s50, s24
    s_addc_u32 s9, s51, 0
    v_lshl_add_u32 v0, v3, 6, v0
    s_waitcnt vmcnt(0)
    v_lshl_add_u32 v0, v1, 16, v0
    s_branch L_v_loop""")
    L.append(f""".section .rodata,"a"
.p2align 6
.amdhsa_kernel {name}
  .amdhsa_next_free_vgpr 168
  .amdhsa_next_free_sgpr 96
  .amdhsa_accum_offset 168
  .amdhsa_group_segment_fixed_size 0
  .amdhsa_kernarg_size 96
  .amdhsa_user_sgpr_count 2
  .amdhsa_user_sgpr_kernarg_segment_ptr 1
  .amdhsa_system_sgpr_workgroup_id_x 1
.end_amdhsa_kernel""")
    return "\n".join(L)+"\n"
if __name__=="__main__":
    kw=eval("dict(%s)"%(sys.argv[1] if len(sys.argv)>1 else ""))
    sys.stdout.write(gen(**kw))
```

```python
import sys, struct
NAME="recurrent_scan__mha_block_cached__geglu_ffn__decode_kernel"
def f2u(x): return struct.unpack("<I",struct.pack("<f",x))[0]

def gen(D=20, PROF=0, XF="nt", WF="nt", SLEEP=0, WD=0, NOFF=0, NOWO=0, TR=4, D2=48, T2=112, ROT=1, ROTS=14, SFL="sc1", LFL="sc1", YF="sc1 nt", TOUCH=0, SCHED=None, NOQ=0, QW=10, WO0=72, E0=2, NOY=0, name=NAME):
    L=[]
    def A(s):
        for ln in s.split("\n"):
            ln=ln.strip()
            if ln.endswith(" sc1"): ln=ln[:-3]+(SFL if "store" in ln else LFL)
            if ln.endswith(" YF"): ln=ln[:-2]+YF
            if ln: L.append(("" if ln.endswith(":") else "    ")+ln)
    NS=8; SLOT=16384
    PBUF=NS*SLOT; RED=PBUF+4096; FL=RED+16384
    O_READY=0; O_DONE=256; O_QF=288; O_WFLAG=320; O_WMAX=384; O_WSUM=448; O_H=512
    XN=FL+1024; XS=960
    LDS=XN+8*XS
    QX=4096; RECB=262144
    RECSZ=4608; R_Y=0; R_Z=2048; R_ML=4096
    TG=80
    PROFBASE=4<<20
    W=40
    def w(i,n=4): return f"v[{W+i}:{W+i+n-1}]"
    def v(i,n): return f"v[{i}:{i+n-1}]"
    C1=f2u(1.4426950408889634/16.0)
    hdr=open("recurrent_scan__mha_block_cached__geglu_ffn__decode.s.ref").read().split("; Override")[0]
    L.append(hdr.rstrip())
    L.append(f"; @launch grid=(256,1,1) block=(576,1,1) lds={LDS}")
    L.append('.amdgcn_target "amdgcn-amd-amdhsa--gfx950"\n.text')
    L.append(f".globl {name}\n.p2align 8\n.type {name},@function\n{name}:")
    def stamp(k):
        if PROF: A(f"s_memrealtime s[{64+2*k}:{65+2*k}]")
    def srd(d,ptr,size):
        A(f"s_mov_b32 s{d}, s{ptr}\ns_mov_b32 s{d+1}, s{ptr+1}\ns_mov_b32 s{d+2}, {size}\ns_mov_b32 s{d+3}, 0x20000")
    lab=[0]
    def newlab(p):
        lab[0]+=1; return f"L_{p}{lab[0]}"
    def wd():
        if WD: A("s_sub_u32 s61, s61, 1\ns_cbranch_scc1 L_end")
    def setflag(off,val):
        A(f"v_mov_b32 v1, {val}\ns_mov_b64 exec, 1\nds_write_b32 v9, v1 offset:{off}\ns_mov_b64 exec, -1")
    def waitflag(off,val,sleep=0):
        a=newlab("w"); b=newlab("wd")
        A(f"""{a}:
        ds_read_b32 v1, v8 offset:{off}
        s_waitcnt lgkmcnt(0)
        v_cmp_gt_i32 vcc, {val}, v1
        s_cbranch_vccz {b}""")
        if sleep: A(f"s_sleep {sleep}")
        wd()
        A(f"s_branch {a}\n{b}:")
    def allred(op,x,t,rows=True,cross=True):
        for m in ("quad_perm:[1,0,3,2]","quad_perm:[2,3,0,1]","row_half_mirror")+(("row_mirror",) if rows else ()):
            A(f"s_nop 1\n{op}_dpp v{x}, v{x}, v{x} {m} row_mask:0xf bank_mask:0xf")
        if cross:
            for p in ("v_permlane16_swap_b32","v_permlane32_swap_b32"):
                A(f"v_mov_b32 v{t}, v{x}\ns_nop 1\n{p} v{x}, v{t}\ns_nop 1\n{op} v{x}, v{x}, v{t}")
    def tag(x):
        for r in range(4): A(f"v_mov_b32_sdwa v{x+r}, s{TG+r} dst_sel:BYTE_0 dst_unused:UNUSED_PRESERVE src0_sel:BYTE_0")
        A("s_nop 0")
    def untag(x,n,t):
        for r in range(n): A(f"v_xor_b32 v{x+r}, s{TG+(r&3)}, v{x+r}")
        A(f"v_or3_b32 v{t}, v{x}, v{x+1}, v{x+2}")
        for r in range(3,n-1,2): A(f"v_or3_b32 v{t}, v{t}, v{x+r}, v{x+r+1}")
        A(f"v_or_b32 v{t}, v{t}, v{x+n-1}\nv_and_b32 v{t}, 0xff, v{t}\nv_cmp_ne_u32 vcc, 0, v{t}")
    def rnd(x,t=None):
        A(f"v_cvt_pk_bf16_f32 v{x}, v{x}, v{x}\nv_and_b32 v{x}, 0xffff0000, v{x}")

    A(f"""s_cmp_ge_u32 s2, 256
    s_cbranch_scc1 L_end
    s_load_dwordx4 s[36:39], s[0:1], 8
    s_load_dwordx2 s[32:33], s[0:1], 0
    s_load_dwordx4 s[40:43], s[0:1], 24
    s_load_dwordx8 s[44:51], s[0:1], 48
    s_load_dwordx4 s[52:55], s[0:1], 80""")
    stamp(0)
    if WD: A(f"s_mov_b32 s61, {WD}")
    A(f"""v_lshrrev_b32 v1, 6, v0
    v_and_b32 v0, 63, v0
    v_readfirstlane_b32 s3, v1
    s_and_b32 s6, s2, 7
    s_lshl_b32 s6, s6, 2
    s_lshr_b32 s7, s2, 6
    s_add_u32 s6, s6, s7
    s_bfe_u32 s5, s2, 0x30003
    s_lshl_b32 s7, s5, 5
    s_add_u32 s7, s7, s6
    s_cmp_lg_u32 s3, 0
    s_cbranch_scc1 L_worker""")
    A("s_setprio 3")
    A(f"""v_lshlrev_b32 v8, 2, v0
    v_add_u32 v8, {FL}, v8
    v_mov_b32 v1, 0
    ds_write_b32 v8, v1 offset:0
    ds_write_b32 v8, v1 offset:256
    v_and_b32 v9, 7, v0
    v_lshlrev_b32 v9, 2, v9
    v_add_u32 v9, {FL}, v9""")
    A("""v_lshrrev_b32 v1, 5, v0
    v_lshlrev_b32 v2, 4, v0
    v_lshlrev_b32 v1, 5, v1
    v_xor_b32 v4, v2, v1
    v_xor_b32 v5, 64, v4
    v_xor_b32 v6, 0x80, v4
    v_xor_b32 v7, 0xc0, v4
    s_lshl_b32 s24, s7, 20
    s_waitcnt lgkmcnt(0)
    s_add_u32 s8, s36, s24
    s_addc_u32 s9, s37, 0
    s_mov_b32 s10, 0x100000
    s_mov_b32 s11, 0x20000
    s_add_u32 s12, s38, s24
    s_addc_u32 s13, s39, 0""")
    if SCHED is None: SCHED=[(D,T2),(D2,128)] if D2 else [(D,128)]
    sfl=[SCHED[0][2] if len(SCHED[0])>2 else "nt"]
    def ld(i): A(f"buffer_load_dwordx4 v{4+i}, s[8:11], s26 offen offset:{i*1024} {sfl[0]} lds")
    for q in range(4):
        if q==0: A(f"s_mul_i32 s26, s2, {ROT}\ns_lshl_b32 s26, s26, {ROTS}\ns_mov_b32 m0, 0\ns_and_b32 s26, s26, 0xfffff")
        else: A(f"s_add_u32 s26, s26, 4096\ns_mov_b32 m0, {q*4096}\ns_and_b32 s26, s26, 0xfffff")
        for i in range(4): ld(i)
        if q==0: A("s_barrier")
    A(f"""s_mov_b32 s25, 1
    s_mov_b32 s27, {SLOT}
    s_mov_b32 s29, 0
    v_mov_b32 v10, 0""")
    if PROF: A("s_mov_b32 s30, 0")
    if PROF: A("s_memrealtime s[70:71]\nv_mov_b32 v20, 0")
    def ldloop(nm,Dd,tend):
        lagi=(Dd+15)%16; lags=(Dd+15)//16
        A(f"""L_ld_loop{nm}:
        s_sub_u32 s28, s25, {NS-1}
        s_waitcnt lgkmcnt(0)""")
        if PROF: A("s_lshr_b32 m0, s25, 1\nv_writelane_b32 v20, s70, m0")
        A(f"""v_cmp_gt_i32 vcc, s28, v10
        s_cbranch_vccz L_ld_go{nm}
        L_ld_spin{nm}:""")
        if PROF: A("s_add_u32 s30, s30, 1")
        wd()
        A(f"""ds_read_b32 v10, v9 offset:{O_DONE}
        s_waitcnt lgkmcnt(0)
        v_cmp_gt_i32 vcc, s28, v10
        s_cbranch_vccnz L_ld_spin{nm}
        L_ld_go{nm}:""")
        for q in range(4):
            A(f"s_add_u32 s26, s26, 4096\ns_add_u32 m0, s27, {q*4096}\ns_and_b32 s26, s26, 0xfffff")
            for i in range(4):
                A(f"s_waitcnt vmcnt({Dd-1})")
                ld(i)
                if q*4+i==lagi:
                    A(f"s_sub_u32 s28, s25, {lags-1}\ns_max_i32 s29, s29, s28\nv_mov_b32 v2, s29\nds_write_b32 v8, v2 offset:{O_READY}")
                if q*4+i==14:
                    A(f"ds_read_b32 v10, v9 offset:{O_DONE}")
                    if PROF: A("s_memrealtime s[70:71]")
        A(f"""s_add_u32 s25, s25, 1
        s_add_u32 s27, s27, {SLOT}
        s_and_b32 s27, s27, {NS*SLOT-1}
        s_cmp_eq_u32 s25, 64
        s_cselect_b32 s8, s12, s8
        s_cselect_b32 s9, s13, s9
        s_cmp_lt_u32 s25, {tend}
        s_cbranch_scc1 L_ld_loop{nm}""")
        return lags
    for k,sc in enumerate(SCHED):
        Dl,te=sc[:2]; sfl[0]=sc[2] if len(sc)>2 else "nt"
        lags=ldloop("abcdefgh"[k],Dl,te)
    for u in range(128-lags,128):
        A(f"v_mov_b32 v2, {u+1}\ns_waitcnt vmcnt({min(Dl-1,16*(127-u))})\nds_write_b32 v8, v2 offset:{O_READY}")
    if PROF:
        stamp(1)
        srd(20,54,0x40000000)
        A(f"""s_waitcnt lgkmcnt(0)
        s_lshl_b32 s24, s2, 8
        s_add_u32 s24, s24, {PROFBASE}
        v_mov_b32 v4, s64
        v_mov_b32 v5, s66
        v_mov_b32 v6, s30
        s_getreg_b32 s31, hwreg(HW_REG_XCC_ID)
        v_mov_b32 v7, s31
        v_mov_b32 v1, 0
        v_lshlrev_b32 v2, 2, v0
        s_add_u32 s25, s24, 65536
        buffer_store_dword v20, v2, s[20:23], s25 offen
        s_mov_b64 exec, 1
        buffer_store_dwordx4 v[4:7], v1, s[20:23], s24 offen""")
    A("s_waitcnt lgkmcnt(0)\ns_endpgm")
    A(f"""L_worker:
    s_sub_u32 s4, s3, 1
    v_mov_b32 v{W+119}, 0
    v_lshlrev_b32 v12, 4, v0
    s_mul_i32 s24, s4, 896
    s_mov_b32 s10, 896
    s_mov_b32 s11, 0x20000
    s_waitcnt lgkmcnt(0)
    s_add_u32 s8, s32, s24
    s_addc_u32 s9, s33, 0
    s_load_dword s84, s[54:55], 0
    buffer_load_dwordx4 v[16:19], v12, s[8:11], 0 offen {XF}
    s_barrier""")
    srd(12,40,448*4096*2)
    A("s_mov_b32 s27, 0\ns_cmp_lg_u32 s4, 7\ns_cbranch_scc1 L_nowq")
    A(f"""v_lshrrev_b32 v2, 1, v0
    v_and_b32 v3, 1, v0
    v_lshlrev_b32 v2, 13, v2
    v_lshl_add_u32 v2, v3, 4, v2
    s_and_b32 s26, s2, 7
    s_lshl_b32 s26, s26, 10
    s_lshr_b32 s27, s2, 3
    s_lshl_b32 s27, s27, 5
    s_mov_b32 m0, {RED}
    s_add_u32 s26, s26, s27""")
    for i in range(14):
        if not NOQ&1: A(f"buffer_load_dwordx4 v2, s[12:15], s26 offen {WF} lds")
        if i<13: A(f"s_mov_b32 m0, {RED+(i+1)*1024}\ns_add_u32 s26, s26, {32*8192}")
    if TOUCH:
        A("s_branch L_notouch\nL_nowq:")
        A(f"""s_lshl_b32 s24, s7, 20
        s_mov_b32 s25, 0x80000
        s_mov_b32 s12, s38
        s_mov_b32 s13, s39
        s_mov_b32 s14, 0x10000000""")
        def sel(c,ptr,size,o0,o1):
            A(f"""s_cmp_eq_u32 s4, {c}
            s_cselect_b32 s12, s{ptr}, s12
            s_cselect_b32 s13, s{ptr+1}, s13
            s_cselect_b32 s14, {size}, s14
            s_cselect_b32 s24, {o0}, s24
            s_cselect_b32 s25, {o1}, s25""")
        A(f"s_mul_i32 s26, s6, 112\ns_mul_i32 s27, s6, {56*896}\ns_lshr_b32 s28, s6, 1\ns_mul_i32 s28, s28, {256*896}\ns_mul_i32 s29, s5, 896")
        sel(1,44,448*1792*2,"s26",447*3584)
        sel(2,46,448*1792*2,"s26",447*3584)
        sel(3,48,448*1792*2,"s27",55*896)
        sel(4,42,448*4096*2,"s28",255*896)
        sel(5,50,8*896,"s29",512)
        sel(6,54,0x40000000,RECB-4096,256*RECSZ+8192)
        A(f"""v_mul_lo_u32 v2, v0, s25
        s_mov_b64 exec, 3
        buffer_load_dword v{W+119}, v2, s[12:15], s24 offen nt
        s_mov_b64 exec, -1
        L_notouch:""")
    else: A("L_nowq:")
    A(f"""s_mul_i32 s24, s7, {RECSZ}
    s_add_u32 s24, s24, {RECB}
    s_add_u32 s16, s54, s24
    s_addc_u32 s17, s55, 0
    s_mov_b32 s18, {RECSZ}
    s_mov_b32 s19, 0x20000""")
    srd(20,54,0x40000000)
    A(f"""v_and_b32 v3, 15, v0
    v_and_b32 v1, 1, v3
    v_cmp_eq_u32 vcc, 1, v1
    v_mov_b32 v14, 0xffff
    v_mov_b32 v15, 0xffff0000
    v_cndmask_b32 v14, v14, v15, vcc
    v_lshrrev_b32 v1, 1, v3""")
    for r in range(4):
        A(f"v_cmp_eq_u32 vcc, {r}, v1\ns_nop 1\nv_cndmask_b32 v{4+r}, 0, v14, vcc")
    A(f"""v_and_b32 v8, 7, v0
    v_lshlrev_b32 v8, 2, v8
    v_add_u32 v8, {FL}, v8
    s_lshl_b32 s25, s4, 2
    s_add_u32 s25, s25, {FL}
    v_mov_b32 v9, s25
    v_add_u32 v10, {RED}, v12
    s_lshl_b32 s25, s4, 10
    v_add_u32 v11, s25, v10
    s_mul_i32 s25, s4, {XS}
    s_add_u32 s25, s25, {XN}
    v_add_u32 v12, s25, v12""")
    for i in range(96,124):
        if i!=119: A(f"v_mov_b32 v{W+i}, 0")
    setflag(O_DONE,"s4")
    KA=W+124
    A(f"""v_lshrrev_b32 v2, 4, v0
    v_and_b32 v3, 7, v0
    v_lshlrev_b32 v13, 4, v2
    v_add_u32 v13, {PBUF}, v13
    v_lshlrev_b32 v3, 1, v3
    v_xor_b32 v3, v3, v2
    v_lshlrev_b32 v3, 4, v3
    v_and_b32 v2, 15, v0
    v_lshl_add_u32 v3, v2, 9, v3
    s_lshl_b32 s25, s4, 14
    v_add_u32 v{KA}, s25, v3
    v_xor_b32 v{KA+1}, 64, v{KA}
    v_xor_b32 v{KA+2}, 0x80, v{KA}
    v_xor_b32 v{KA+3}, 0xc0, v{KA}""")
    A("""s_cmp_lg_u32 s4, 7
    s_cbranch_scc1 L_xw0
    s_waitcnt vmcnt(""" + ("0" if NOQ&1 else "14") + """)
    s_branch L_xw1
    L_xw0:
    s_waitcnt vmcnt(""" + str(1 if TOUCH else 0) + """)
    L_xw1:""")
    for k in range(4):
        A(f"v_lshlrev_b32 v{32+2*k}, 16, v{16+k}\nv_and_b32 v{33+2*k}, 0xffff0000, v{16+k}")
    A("v_add_f32 v1, v32, v33")
    for k in range(2,8): A(f"v_add_f32 v1, v1, v{32+k}")
    allred("v_add_f32",1,2)
    A(f"v_mul_f32 v1, {f2u(1.0/448)}, v1\nv_mov_b32 v3, 0")
    for k in range(8): A(f"v_sub_f32 v2, v{32+k}, v1\nv_fmac_f32 v3, v2, v2")
    A("v_cmp_gt_u32 vcc, 56, v0\ns_nop 1\nv_cndmask_b32 v3, 0, v3, vcc")
    allred("v_add_f32",3,2)
    A(f"v_mul_f32 v3, {f2u(1.0/448)}, v3")
    rnd(1); rnd(3)
    A(f"v_add_f32 v3, {f2u(1e-5)}, v3"); rnd(3)
    A("v_sqrt_f32 v3, v3\ns_nop 0"); rnd(3)
    A("v_rcp_f32 v2, v3\ns_nop 0")
    A("v_fma_f32 v14, -v3, v2, 1.0\nv_fmac_f32 v2, v14, v2")
    for k in range(8): A(f"v_sub_f32 v{32+k}, v{32+k}, v1")
    for k in range(8): rnd(32+k)
    for k in range(8): A(f"v_mul_f32 v{24+k}, v{32+k}, v2")
    for k in range(8): A(f"v_fma_f32 v{32+k}, -v{24+k}, v3, v{32+k}")
    for k in range(8): A(f"v_fmac_f32 v{24+k}, v{32+k}, v2")
    for k in range(4): A(f"v_cvt_pk_bf16_f32 v{16+k}, v{24+2*k}, v{25+2*k}")
    A(f"""s_mov_b32 exec_hi, 0x00ffffff
    ds_write_b128 v12, v[16:19]
    s_mov_b32 exec_hi, -1
    s_waitcnt lgkmcnt(0)
    s_add_u32 s84, s84, 0x01010101
    s_and_b32 s{TG}, s84, 0xff
    s_bfe_u32 s{TG+1}, s84, 0x80008
    s_bfe_u32 s{TG+2}, s84, 0x80010
    s_lshr_b32 s{TG+3}, s84, 24""")
    setflag(O_WFLAG,1)
    A("s_cmp_lg_u32 s4, 7\ns_cbranch_scc1 L_noq")
    A(f"""v_lshrrev_b32 v2, 4, v0
    v_and_b32 v3, 15, v0
    v_lshlrev_b32 v14, 8, v2
    v_lshl_add_u32 v14, v3, 3, v14
    v_add_u32 v14, {RED}, v14
    v_and_b32 v1, 7, v0
    v_mul_u32_u24 v15, {XS}, v1
    v_lshl_add_u32 v15, v2, 4, v15
    v_add_u32 v15, {XN}, v15
    v_lshlrev_b32 v3, 14, v3
    v_lshl_add_u32 v2, v2, 4, v3
    s_and_b32 s24, s2, 7
    s_lshl_b32 s24, s24, 11
    s_lshr_b32 s25, s2, 3
    s_lshl_b32 s25, s25, 6
    s_add_u32 s24, s24, s25
    s_add_u32 s24, s24, {QX}
    s_lshr_b32 s25, s7, 1
    s_lshl_b32 s25, s25, 10
    s_add_u32 s25, s25, {QX}
    v_lshlrev_b32 v3, 4, v0""")
    waitflag(O_WFLAG,1)
    for st in range(14): A(f"ds_read_b128 {w(st*4)}, v15 offset:{st*64}")
    A("s_waitcnt vmcnt(0) lgkmcnt(0)")
    def trr(st):
        A(f"ds_read_b64_tr_b16 {w(56+st*4,2)}, v14 offset:{st*1024}\nds_read_b64_tr_b16 {w(58+st*4,2)}, v14 offset:{st*1024+128}")
    for st in range(7): trr(st)
    for st in range(14):
        A(f"s_waitcnt lgkmcnt({min(12,2*(13-st))})")
        c="0" if st<2 else v(16+4*(st&1),4)
        A(f"v_mfma_f32_16x16x32_bf16 {v(16+4*(st&1),4)}, {w(56+st*4)}, {w(st*4)}, {c}")
        if st+7<14: trr(st+7)
    A("s_nop 7")
    for r in range(4): A(f"v_add_f32 v{16+r}, v{16+r}, v{20+r}")
    for r in range(4): rnd(16+r)
    for r in range(4): A(f"v_or_b32 v{16+r}, s{TG+r}, v{16+r}")
    A(f"""s_mov_b32 exec_lo, 0x00ff00ff
    s_mov_b32 exec_hi, 0x00ff00ff
    {"" if NOQ&2 else "buffer_store_dwordx4 v[16:19], v2, s[20:23], s24 offen sc1"}
    s_mov_b64 exec, -1
    v_lshlrev_b32 v14, 3, v0
    v_add_u32 v14, {PBUF}, v14
    s_mov_b32 s26, 0x07060302
    s_mov_b32 s27, s25
    L_noq:""")
    SF=W+120
    A(f"""s_mov_b32 s28, 0
    s_add_u32 s29, s4, 1
    s_mov_b32 s30, 0x01010101
    s_mov_b32 s31, 0x01010101""")
    waitflag(O_READY,"s29",SLEEP)
    for half in range(2):
        for jj in range(4):
            for ab in range(2):
                A(f"ds_read_b128 {w(32+half*32+(jj*2+ab)*4)}, v{KA+jj} offset:{half*256+ab*8192}")
        if half==0: A("s_waitcnt lgkmcnt(4)")
    A("s_add_u32 s25, s4, 8")
    setflag(O_DONE,"s25")
    A("s_cmp_lg_u32 s4, 7\ns_cbranch_scc1 L_noq2")
    if QW: waitflag(O_READY,QW,SLEEP)
    A("L_qp:")
    wd()
    if not NOQ&4: A("buffer_load_dwordx4 v[20:23], v3, s[20:23], s27 offen sc1\ns_waitcnt vmcnt(0)")
    untag(20,4,1)
    if NOQ:
        for r in range(4): A(f"v_mov_b32 v{20+r}, 0")
    A(f"""{"" if NOQ&6 else "s_cbranch_vccnz L_qp"}
    v_perm_b32 v20, v21, v20, s26
    v_perm_b32 v21, v23, v22, s26
    v_mov_b32 v1, 1
    ds_write_b64 v14, v[20:21]
    ds_write_b32 v8, v1 offset:{O_QF}
    L_noq2:""")
    waitflag(O_QF,1,SLEEP)
    stamp(1)
    for jj in range(8): A(f"ds_read_b128 {w(4*jj)}, v13 offset:{64*jj}")
    A("s_waitcnt lgkmcnt(0)")
    for half in range(2):
        for jj in range(4):
            for ab in range(2):
                c="0" if (half==0 and jj==0) else v(16+4*ab,4)
                A(f"v_mfma_f32_16x16x32_bf16 {v(16+4*ab,4)}, {w(32+half*32+(jj*2+ab)*4)}, {w((half*4+jj)*4)}, {c}")
    A("s_branch L_k_tail\nL_k_loop:")
    waitflag(O_READY,"s29",SLEEP)
    for half in range(2):
        for jj in range(4):
            for ab in range(2):
                A(f"ds_read_b128 {w(32+(jj*2+ab)*4)}, v{KA+jj} offset:{half*256+ab*8192}")
        for jj in range(4):
            for ab in range(2):
                A(f"s_waitcnt lgkmcnt({7-jj*2-ab})")
                c="0" if (half==0 and jj==0) else v(16+4*ab,4)
                A(f"v_mfma_f32_16x16x32_bf16 {v(16+4*ab,4)}, {w(32+(jj*2+ab)*4)}, {w((half*4+jj)*4)}, {c}")
    A("L_k_tail:")
    A(f"""s_add_u32 s29, s29, 8
    s_sub_u32 s25, s29, 1
    s_min_u32 s25, s25, 64""")
    setflag(O_DONE,"s25")
    A("s_nop 3\ns_mov_b64 exec, s[30:31]")
    for k in range(4): A(f"v_cvt_pk_bf16_f32 v{SF+k}, v{16+2*k}, v{17+2*k}")
    A(f"""s_mov_b64 exec, -1
    s_lshl_b64 s[30:31], s[30:31], 1
    s_add_u32 s28, s28, 1
""")
    for e in range(1,5): A(f"s_cmp_eq_u32 s28, {e+E0-1}\ns_cbranch_scc1 L_ev1_{e}")
    A(f"""s_cmp_eq_u32 s28, {E0+4}
    s_cbranch_scc1 L_ev2
    s_cmp_eq_u32 s28, {E0+5}
    s_cbranch_scc1 L_ev3
    s_cmp_lt_u32 s28, 8
    s_cbranch_scc1 L_k_loop
    s_branch L_mid""")
    A("L_ev1_1:")
    srd(12,44,448*1792*2)
    A(f"""s_cmp_lt_u32 s6, 28
    s_cselect_b32 s14, s14, 0
    v_lshrrev_b32 v2, 4, v0
    v_and_b32 v3, 7, v0
    v_mul_u32_u24 v2, {14*3584}, v2
    v_lshl_add_u32 v2, v3, 4, v2
    s_mul_i32 s24, s4, {56*3584}
    s_lshl_b32 s25, s6, 7
    s_add_u32 s24, s24, s25
    s_mov_b32 s27, s24""")
    for e in range(4):
        if e and TR: A(f"L_ev1_{e+1}:")
        if e==2: A("s_mov_b32 s12, s46\ns_mov_b32 s13, s47")
        m="0x00ff00ff" if e<2 else "0xff00ff00"
        sr=27 if e<2 else 24
        A(f"s_mov_b32 exec_lo, {m}\ns_mov_b32 exec_hi, {m}")
        for i in range(7*(e&1),7*(e&1)+7):
            if not NOFF: A(f"buffer_load_dwordx4 {w(64+4*i)}, v2, s[12:15], s{sr} offen {WF}\ns_add_u32 s{sr}, s{sr}, 3584")
        if TR or e==3: A("s_mov_b64 exec, -1\ns_branch L_k_loop")
    A(f"""L_ev2:
    v_lshrrev_b32 v2, 4, v0
    s_mul_i32 s24, s5, {XS}
    s_mul_i32 s25, s4, 112
    s_add_u32 s24, s24, s25
    s_add_u32 s24, s24, {XN}
    v_mul_u32_u24 v2, 28, v2
    v_add_u32 v2, s24, v2""")
    for k in range(7): A(f"ds_read_b32 v{24+k}, v2 offset:{4*k}")
    A("s_mov_b32 s24, 0x01000100\ns_mov_b32 s25, 0x03020302\ns_waitcnt lgkmcnt(0)")
    for k in range(6,-1,-1):
        A(f"v_perm_b32 v{25+2*k}, v{24+k}, v{24+k}, s25\nv_perm_b32 v{24+2*k}, v{24+k}, v{24+k}, s24")
    A("s_waitcnt vmcnt(0)")
    for i in range(14):
        bt=W+32+(i&1)*4
        for r in range(4): A(f"v_and_b32 v{bt+r}, v{4+r}, v{24+i}")
        c="0" if i==0 else v(16,4)
        A(f"s_nop 1\nv_mfma_f32_16x16x32_bf16 {v(16,4)}, {w(64+4*i)}, {v(bt,4)}, {c}")
    srd(12,48,1792*448*2)
    A(f"""v_lshrrev_b32 v2, 4, v0
    v_and_b32 v3, 15, v0
    v_mul_u32_u24 v2, {2*896}, v2
    v_lshl_add_u32 v2, v3, 4, v2
    v_cmp_gt_u32 vcc, 8, v3
    s_mul_i32 s24, s6, {64*896}
    s_mul_i32 s25, s4, {8*896}
    v_mov_b32 v3, 0x40000000
    v_cndmask_b32 v3, v3, v2, vcc
    s_add_u32 s24, s24, s25
    ds_write_b128 v11, v[16:19] offset:8192""")
    setflag(O_WFLAG,2)
    for r in range(2):
        for blk in range(4):
            if not NOFF: A(f"buffer_load_dwordx4 {w(64+r*16+blk*4)}, v{3 if blk==3 else 2}, s[12:15], s24 offen offset:{r*896+blk*256} {WF}")
    A("s_branch L_k_loop")
    A("L_ev3:\ns_cmp_lg_u32 s4, 0\ns_cbranch_scc1 L_k_loop")
    waitflag(O_WFLAG,2,SLEEP)
    for c in range(8): A(f"ds_read_b128 {w(32+4*c)}, v10 offset:{8192+c*1024}")
    A("s_waitcnt lgkmcnt(0)")
    for c in range(1,8):
        for r in range(4): A(f"v_add_f32 v{W+32+r}, v{W+32+r}, v{W+32+4*c+r}")
    A(f"""v_lshrrev_b32 v2, 4, v0
    v_and_b32 v2, 1, v2
    v_and_b32 v3, 7, v0
    v_lshlrev_b32 v3, 2, v3
    v_lshl_add_u32 v3, v2, 7, v3
    v_add_u32 v3, {FL+O_H}, v3""")
    K0=f2u(-2*0.7978845608028654*1.4426950408889634); K1=f2u(0.044715)
    for r in range(4):
        x=W+32+r; u=W+36; t=W+37
        rnd(x)
        A(f"""v_mov_b32 v{u}, v{x}
        s_nop 1
        v_permlane32_swap_b32 v{x}, v{u}
        s_nop 1
        v_mul_f32 v{t}, v{x}, v{x}
        v_mul_f32 v{t}, {K1}, v{t}
        v_fma_f32 v{t}, v{t}, v{x}, v{x}
        v_mul_f32 v{t}, {K0}, v{t}
        v_exp_f32 v{t}, v{t}
        s_nop 0
        v_add_f32 v{t}, 1.0, v{t}
        v_rcp_f32 v{t}, v{t}
        s_nop 0
        v_mul_f32 v{x}, v{x}, v{t}""")
        rnd(x)
        A(f"v_mul_f32 v{x}, v{x}, v{u}"); rnd(x)
    A("s_mov_b32 exec_lo, 0x00ff00ff\ns_mov_b32 exec_hi, 0")
    for r in range(4): A(f"ds_write_b32 v3, v{W+32+r} offset:{32*r}")
    A("s_mov_b64 exec, -1\ns_branch L_k_loop")
    A("L_mid:")
    stamp(2)
    A("s_waitcnt vmcnt(0)")
    for k in range(4):
        A(f"v_lshlrev_b32 v{24+2*k}, 16, v{SF+k}\nv_and_b32 v{25+2*k}, 0xffff0000, v{SF+k}")
    for k in range(8): A(f"v_mov_b32 v{SF+k}, 0")
    A("""v_max3_f32 v3, v24, v25, v26
    v_max3_f32 v3, v3, v27, v28
    v_max3_f32 v3, v3, v29, v30
    v_max_f32 v3, v3, v31""")
    allred("v_max_f32",3,2)
    A(f"s_mov_b64 exec, 1\nds_write_b32 v9, v3 offset:{O_WMAX}\ns_mov_b64 exec, -1")
    setflag(O_WFLAG,3)
    A(f"""v_lshrrev_b32 v2, 4, v0
    v_lshlrev_b32 v13, 4, v2
    v_add_u32 v13, {PBUF}, v13
    v_and_b32 v3, 7, v0
    v_lshl_add_u32 v12, v3, 9, v13
    s_lshl_b32 s25, s4, 6
    v_add_u32 v12, s25, v12""")
    waitflag(O_WFLAG,3)
    A(f"ds_read_b32 v3, v8 offset:{O_WMAX}\ns_waitcnt lgkmcnt(0)")
    allred("v_max_f32",3,2,rows=False,cross=False)
    A(f"""s_mov_b32 s26, {C1}
    v_mul_f32 v2, s26, v3
    v_readfirstlane_b32 s56, v3""")
    for k in range(8): A(f"v_fma_f32 v{24+k}, v{24+k}, s26, -v2")
    for k in range(8): A(f"v_exp_f32 v{24+k}, v{24+k}")
    A("v_add_f32 v3, v24, v25")
    for k in range(2,8): A(f"v_add_f32 v3, v3, v{24+k}")
    for k in range(4): A(f"v_cvt_pk_bf16_f32 v{32+k}, v{24+2*k}, v{25+2*k}")
    A("s_mov_b32 exec_lo, 0x00ff00ff\ns_mov_b32 exec_hi, 0x00ff00ff\nds_write_b128 v12, v[32:35]\ns_mov_b64 exec, -1")
    allred("v_add_f32",3,2)
    A(f"v_mul_f32 v3, 0.5, v3\ns_mov_b64 exec, 1\nds_write_b32 v9, v3 offset:{O_WSUM}\ns_mov_b64 exec, -1")
    setflag(O_WFLAG,4)
    A(f"""v_lshrrev_b32 v2, 4, v0
    s_lshl_b32 s25, s4, 5
    s_add_u32 s25, s25, {FL+O_H}
    v_lshl_add_u32 v3, v2, 3, s25
    ds_read_b64 v[20:21], v3""")
    for k in (16,17,18,19,22,23): A(f"v_mov_b32 v{k}, 0")
    A(f"""v_bfe_u32 v3, v0, 2, 4
    v_and_b32 v1, 7, v3
    s_lshl_b32 s25, s4, 1
    v_xor_b32 v1, s25, v1
    v_lshlrev_b32 v1, 5, v1
    v_lshl_add_u32 v1, v3, 9, v1
    v_and_b32 v3, 3, v0
    v_lshl_add_u32 v11, v3, 3, v1
    v_xor_b32 v12, 32, v11
    v_mov_b32 v15, 1.0""")
    waitflag(O_WFLAG,4)
    A(f"ds_read_b32 v3, v8 offset:{O_WSUM}\ns_waitcnt lgkmcnt(0)")
    allred("v_add_f32",3,2,rows=False,cross=False)
    A(f"""s_nop 0
    v_readfirstlane_b32 s57, v3
    s_cmp_lg_u32 s4, 3
    s_cbranch_scc1 L_noml
    v_mov_b32 v24, s56
    v_mov_b32 v25, v3
    v_mov_b32 v26, 0
    v_mov_b32 v27, 0
    v_mov_b32 v1, {R_ML}""")
    tag(24)
    A(f"""s_mov_b64 exec, 1
    buffer_store_dwordx4 v[24:27], v1, s[16:19], 0 offen YF
    s_mov_b64 exec, -1
    L_noml:
    s_mov_b32 s58, 5
    s_mov_b32 s59, {R_Y}
    s_mov_b32 s28, 64""")
    A("L_gemv:")
    for k in range(8): A(f"v_mul_f32 v{16+k}, v{16+k}, v15")
    for k in range(8): A(f"v_cvt_pk_bf16_f32 v{16+k}, v{16+k}, v{16+k}")
    def b1(s):
        for r in range(4): A(f"v_and_b32 v{32+r}, v{4+r}, v{16+s}")
    def b2(s):
        for r in range(4): A(f"v_and_b32_dpp v{36+r}, v{4+r}, v{16+s} row_ror:8 row_mask:0xf bank_mask:0xf")
    b1(0); b2(0)
    for s in range(8):
        for u in range(2):
            c="0" if s==0 else v(24+4*u,4)
            A(f"v_mfma_f32_16x16x32_bf16 {v(24+4*u,4)}, {w(s*16+u*8)}, v[32:35], {c}")
        if s<7: b1(s+1)
        for u in range(2):
            A(f"v_mfma_f32_16x16x32_bf16 {v(24+4*u,4)}, {w(s*16+u*8+4)}, v[36:39], {v(24+4*u,4)}")
        if s<7: b2(s+1)
    A(f"""s_lshl_b32 s25, s4, 11
    v_add_u32 v2, s25, v10
    v_mov_b32 v1, s58
    s_nop 4
    ds_write_b128 v2, v[24:27]
    ds_write_b128 v2, v[28:31] offset:1024
    s_mov_b64 exec, 1
    ds_write_b32 v9, v1 offset:{O_WFLAG}
    s_mov_b64 exec, -1
    s_cmp_gt_u32 s4, 1
    s_cbranch_scc1 L_nopub
    s_lshl_b32 s25, s4, 10
    v_add_u32 v2, s25, v10
    s_add_u32 s25, s25, s59
    v_lshlrev_b32 v3, 4, v0""")
    waitflag(O_WFLAG,"s58")
    for c in range(6): A(f"ds_read_b128 {v(16+4*c,4)}, v2 offset:{c*2048}")
    A("s_waitcnt lgkmcnt(3)")
    for r in range(4): A(f"v_add_f32 v{16+r}, v{16+r}, v{20+r}")
    for r in range(4): A(f"v_add_f32 v{16+r}, v{16+r}, v{24+r}")
    for c in range(6,8): A(f"ds_read_b128 {v(20+4*(c-6),4)}, v2 offset:{c*2048}")
    A("s_waitcnt lgkmcnt(2)")
    for r in range(4): A(f"v_add_f32 v{28+r}, v{28+r}, v{32+r}")
    for r in range(4): A(f"v_add_f32 v{16+r}, v{16+r}, v{36+r}")
    for r in range(4): A(f"v_add_f32 v{16+r}, v{16+r}, v{28+r}")
    A("s_waitcnt lgkmcnt(0)")
    for r in range(4): A(f"v_add_f32 v{20+r}, v{20+r}, v{24+r}")
    for r in range(4): A(f"v_add_f32 v{16+r}, v{16+r}, v{20+r}")
    tag(16)
    A(f"""s_cmp_eq_u32 s58, 6
    s_cbranch_scc0 L_puby
    buffer_store_dwordx4 v[16:19], v3, s[16:19], s25 offen sc1
    s_branch L_final
    L_puby:
    buffer_store_dwordx4 v[16:19], v3, s[16:19], s25 offen YF
    s_nop 1
    L_nopub:
    s_cmp_eq_u32 s58, 6
    s_cbranch_scc1 L_final""")
    srd(12,42,4096*448*2)
    A(f"""v_lshrrev_b32 v2, 4, v0
    v_and_b32 v3, 15, v0
    v_mul_u32_u24 v2, {4*896}, v2
    v_lshl_add_u32 v2, v3, 4, v2
    v_cmp_gt_u32 vcc, 8, v3
    s_lshr_b32 s24, s6, 1
    s_lshl_b32 s24, s24, 3
    s_add_u32 s24, s24, s4
    s_mul_i32 s24, s24, {32*896}
    v_mov_b32 v3, 0x40000000
    v_cndmask_b32 v38, v3, v2, vcc""")
    def wold(a,r):
        for blk in range(4):
            if not NOWO: A(f"buffer_load_dwordx4 {w((a*4+r)*16+blk*4)}, v{38 if blk==3 else 39}, s[12:15], s62 offen offset:{r*896+blk*256} {WF}")
        if a==0 and r==3: A(f"s_add_u32 s62, s62, {16*896}")
    A("v_mov_b32 v39, v2\ns_mov_b32 s62, s24")
    for k in range(16,24): A(f"v_mov_b32 v{k}, 0")
    assert WO0+9*TR<=127
    A(f"s_mul_i32 s60, s4, {TR}\ns_lshr_b32 s60, s60, 3\ns_add_u32 s60, s60, {WO0}\ns_mov_b32 s27, 0\ns_mov_b32 s63, 0")
    stamp(3)
    A(f"""L_v_loop:
    s_add_u32 s28, s28, 1
    v_add_u32 v2, s27, v11
    v_add_u32 v3, s27, v12
    ds_read_b128 v[32:35], v13""")
    waitflag(O_READY,"s28",SLEEP)
    A(f"""ds_read_b64_tr_b16 v[24:25], v2
    ds_read_b64_tr_b16 v[26:27], v2 offset:8192
    ds_read_b64_tr_b16 v[28:29], v3
    ds_read_b64_tr_b16 v[30:31], v3 offset:8192
    v_mov_b32 v1, s28
    v_add_u32 v13, 64, v13
    s_add_u32 s27, s27, {SLOT}
    s_and_b32 s27, s27, {NS*SLOT-1}
    s_mov_b64 exec, 1
    ds_write_b32 v9, v1 offset:{O_DONE}
    s_mov_b64 exec, -1
    s_waitcnt lgkmcnt(3)
    v_mfma_f32_16x16x32_bf16 v[16:19], v[24:27], v[32:35], v[16:19]
    s_waitcnt lgkmcnt(1)
    v_mfma_f32_16x16x32_bf16 v[20:23], v[28:31], v[32:35], v[20:23]
    s_cmp_lg_u32 s28, s60
    s_cbranch_scc1 L_v_loop
    s_cmp_lg_u32 s28, 128
    s_cbranch_scc1 L_vev""")
    stamp(4)
    A(f"""s_mov_b32 s58, 6
    s_mov_b32 s59, {R_Z}
    s_nop 1
    s_branch L_gemv""")
    A("L_vev:")
    if TR:
        A(f"s_add_u32 s60, s60, {TR}\ns_add_u32 s63, s63, 1")
        for e in range(8): A(f"s_cmp_eq_u32 s63, {e+1}\ns_cbranch_scc1 L_wo{e}")
        A("s_branch L_vev2")
        for e in range(8):
            A(f"L_wo{e}:"); wold(e>>2,e&3); A("s_branch L_v_loop")
        A("L_vev2:")
    A(f"""s_mov_b32 s60, 128
    s_xor_b32 s24, s7, 1
    s_mul_i32 s24, s24, {RECSZ}
    v_mov_b32 v36, {RECB+R_ML}
    L_mlp:""")
    wd()
    A("buffer_load_dwordx4 v[28:31], v36, s[20:23], s24 offen YF\ns_waitcnt vmcnt(0)")
    untag(28,4,1)
    A(f"""s_cbranch_vccnz L_mlp
    v_mov_b32 v2, v28
    v_mov_b32 v3, v29
    v_max_f32 v24, s56, v2
    v_sub_f32 v25, s56, v24
    v_sub_f32 v2, v2, v24
    v_mul_f32 v25, s26, v25
    v_mul_f32 v2, s26, v2
    v_exp_f32 v25, v25
    v_exp_f32 v2, v2
    s_nop 0
    v_mul_f32 v3, v3, v2
    v_fma_f32 v3, v25, s57, v3
    v_rcp_f32 v3, v3
    s_nop 0
    v_mul_f32 v15, v25, v3
    s_cmp_lg_u32 s4, 2
    s_cbranch_scc1 L_v_loop
    s_branch L_gather
    L_final:""")
    stamp(5)
    A(f"""s_cmp_lg_u32 s4, 2
    s_cbranch_scc1 L_exit
    L_gather:
    v_bfe_u32 v2, v0, 2, 4
    v_and_b32 v3, 3, v0
    v_mul_u32_u24 v2, {RECSZ}, v2
    v_lshl_add_u32 v2, v3, 4, v2
    s_mul_i32 s24, s5, {32*RECSZ}
    s_add_u32 s24, s24, {RECB}
    s_lshl_b32 s25, s6, 6
    s_add_u32 s24, s24, s25
    s_add_u32 s24, s24, s59
    s_add_u32 s25, s24, {16*RECSZ}
    L_gp:""")
    wd()
    A(f"""s_cmp_eq_u32 s58, 6
    s_cbranch_scc0 L_gpy
    buffer_load_dwordx4 v[24:27], v2, s[20:23], s24 offen sc1
    buffer_load_dwordx4 v[28:31], v2, s[20:23], s25 offen sc1
    L_gpw:
    s_waitcnt vmcnt(0)
""")
    untag(24,8,1)
    A(f"""s_cbranch_vccnz L_gp
    v_add_f32 v24, v24, v28
    v_add_f32 v25, v25, v29
    v_add_f32 v26, v26, v30
    v_add_f32 v27, v27, v31
    s_nop 0
    v_permlane32_swap_b32 v24, v25
    v_permlane32_swap_b32 v26, v27
    s_nop 0
    v_add_f32 v24, v24, v25
    v_add_f32 v26, v26, v27
    s_nop 1
    v_permlane16_swap_b32 v24, v26
    s_nop 1
    v_add_f32 v24, v24, v26
    s_nop 1
    v_add_f32_dpp v24, v24, v24 row_ror:4 row_mask:0xf bank_mask:0xf
    s_nop 1
    v_add_f32_dpp v24, v24, v24 row_ror:8 row_mask:0xf bank_mask:0xf""")
    rnd(24)
    A(f"""s_cmp_lg_u32 s58, 6
    s_cbranch_scc1 L_gy
    v_mul_f32 v24, v24, v14""")
    rnd(24)
    A("""v_and_b32 v1, 0xffff0000, v0
    v_and_b32 v2, 0x0000ffc0, v0
    v_add_f32 v24, v24, v1
    v_lshrrev_b32 v2, 5, v2
    v_cvt_pk_bf16_f32 v24, v24, v24
    buffer_store_short v24, v2, s[8:11], 0 offen
    s_cmp_lg_u32 s2, 0
    s_cbranch_scc1 L_exit
    v_mov_b32 v1, s84
    v_mov_b32 v2, 0
    s_mov_b64 exec, 1
    buffer_store_dword v1, v2, s[20:23], 0 offen sc1
    s_mov_b64 exec, -1
    L_exit:""")
    if PROF:
        stamp(6)
        A(f"""s_waitcnt lgkmcnt(0)
        s_lshl_b32 s24, s2, 8
        s_add_u32 s24, s24, {PROFBASE+32}
        s_cmp_gt_u32 s4, 2
        s_cbranch_scc1 L_end
        s_lshl_b32 s25, s4, 5
        s_add_u32 s24, s24, s25""")
        for k in range(7): A(f"v_mov_b32 v{24+k}, s{64+2*k}")
        A("""v_mov_b32 v1, 0
        s_mov_b64 exec, 1
        buffer_store_dwordx4 v[24:27], v1, s[20:23], s24 offen
        buffer_store_dwordx4 v[28:31], v1, s[20:23], s24 offen offset:16""")
    A("L_end:\ns_endpgm")
    A("""L_gpy:
    buffer_load_dwordx4 v[24:27], v2, s[20:23], s24 offen YF
    buffer_load_dwordx4 v[28:31], v2, s[20:23], s25 offen YF
    s_branch L_gpw""")
    A(f"""L_gy:
    v_mul_f32 v1, {f2u(-1.4426950408889634)}, v24
    v_exp_f32 v1, v1
    s_nop 0
    v_add_f32 v1, 1.0, v1
    v_rcp_f32 v1, v1
    s_nop 0
    v_mul_f32 v14, v24, v1""")
    rnd(14)
    A(f"""v_and_b32 v1, 3, v0
    s_lshl_b32 s24, s6, 2
    v_add_u32 v1, s24, v1
    v_bfe_u32 v2, v0, 4, 1
    v_bfe_u32 v3, v0, 5, 1
    v_lshl_add_u32 v2, v2, 1, v3
    v_bfe_u32 v3, v1, 4, 2
    v_lshl_add_u32 v2, v3, 2, v2
    v_lshrrev_b32 v3, 6, v1
    v_bfe_u32 v24, v1, 3, 1
    v_lshl_add_u32 v3, v3, 1, v24
    v_lshlrev_b32 v3, 7, v3
    v_lshl_add_u32 v3, v2, 3, v3
    v_and_b32 v1, 7, v1
    v_add_u32 v3, v3, v1
    v_and_b32 v1, 15, v0
    v_cmp_gt_u32 vcc, 4, v1
    v_mov_b32 v1, 1023
    s_nop 0
    v_cndmask_b32 v3, v1, v3, vcc
    v_lshlrev_b32 v2, 1, v3
    s_mul_i32 s24, s5, 896
    s_add_u32 s8, s32, s24
    s_addc_u32 s9, s33, 0
    s_mov_b32 s10, 896
    s_mov_b32 s11, 0x20000
    buffer_load_ushort v1, v2, s[8:11], 0 offen nt
    s_add_u32 s8, s50, s24
    s_addc_u32 s9, s51, 0
    v_lshl_add_u32 v0, v3, 6, v0
    s_waitcnt vmcnt(0)
    v_lshl_add_u32 v0, v1, 16, v0
    s_branch L_v_loop""")
    L.append(f""".section .rodata,"a"
.p2align 6
.amdhsa_kernel {name}
  .amdhsa_next_free_vgpr 168
  .amdhsa_next_free_sgpr 96
  .amdhsa_accum_offset 168
  .amdhsa_group_segment_fixed_size 0
  .amdhsa_kernarg_size 96
  .amdhsa_user_sgpr_count 2
  .amdhsa_user_sgpr_kernarg_segment_ptr 1
  .amdhsa_system_sgpr_workgroup_id_x 1
.end_amdhsa_kernel""")
    return "\n".join(L)+"\n"
if __name__=="__main__":
    kw=eval("dict(%s)"%(sys.argv[1] if len(sys.argv)>1 else ""))
    sys.stdout.write(gen(**kw))
```

```python
import sys, importlib
sys.path.insert(0,"gen")
NAME="recurrent_scan__mha_block_cached__geglu_ffn__decode_kernel"
def probe(mod,kw,off,op,mult):
    s=importlib.import_module(mod).gen(**kw)
    l=[x for x in s.split("\n") if x.startswith("; @launch")][0]
    k=l.replace("@launch ","@launch kernel=%s "%NAME)
    s=s.replace(l,k+"\n; @launch kernel=probe_kernel grid=(1,1,1) block=(64,1,1) lds=0")
    def red(o,x):
        r=""
        for m in ("quad_perm:[1,0,3,2]","quad_perm:[2,3,0,1]","row_half_mirror","row_mirror"):
            r+=f"s_nop 1\n{o}_dpp v{x}, v{x}, v{x} {m} row_mask:0xf bank_mask:0xf\n"
        for p in ("v_permlane16_swap_b32","v_permlane32_swap_b32"):
            r+=f"v_mov_b32 v20, v{x}\ns_nop 1\n{p} v{x}, v20\ns_nop 1\n{o} v{x}, v{x}, v20\n"
        return r
    o={"max":"v_max_u32","mean":"v_add_u32","min":"v_min_u32"}[op]
    body=f""".globl probe_kernel
.p2align 8
.type probe_kernel,@function
probe_kernel:
s_cmp_lg_u32 s2, 0
s_cbranch_scc1 L_pend
s_load_dwordx2 s[4:5], s[0:1], 88
v_lshlrev_b32 v1, 10, v0
s_mov_b32 s6, 0x40000000
s_mov_b32 s7, 0x20000
s_mov_b32 s8, {4<<20}
s_mov_b32 s9, {(4<<20)+off}
s_waitcnt lgkmcnt(0)
"""
    for i in range(4):
        body+=f"buffer_load_dword v{2+i}, v1, s[4:7], s8 offen offset:{256*i}\nbuffer_load_dword v{6+i}, v1, s[4:7], s9 offen offset:{256*i}\n"
    body+="s_waitcnt vmcnt(0)\nv_min_u32 v2, v2, v3\nv_min_u32 v2, v2, v4\nv_min_u32 v2, v2, v5\n"+red("v_min_u32",2)
    for i in range(4): body+=f"v_sub_u32 v{6+i}, v{6+i}, v2\n"
    body+=f"{o} v6, v6, v7\n{o} v6, v6, v8\n{o} v6, v6, v9\n"+red(o,6)
    body+=f"s_nop 1\nv_readfirstlane_b32 s10, v6\ns_mul_i32 s10, s10, {mult}\n"
    if op=="mean": body+="s_lshr_b32 s10, s10, 8\n"
    body+="""s_min_u32 s10, s10, 200000
s_memrealtime s[12:13]
s_waitcnt lgkmcnt(0)
L_pw:
s_memrealtime s[14:15]
s_waitcnt lgkmcnt(0)
s_sub_u32 s14, s14, s12
s_cmp_lt_u32 s14, s10
s_cbranch_scc1 L_pw
L_pend:
s_endpgm
"""
    i=s.index('.section .rodata')
    desc=s[s.index('.p2align 6',i):].replace(NAME,"probe_kernel")
    return s[:i]+body+s[i:]+desc
if __name__=="__main__":
    kw=eval("dict(%s)"%sys.argv[2]); kw['PROF']=2
    sys.stdout.write(probe(sys.argv[1],kw,int(sys.argv[3]),sys.argv[4],int(sys.argv[5])))
```

```python
import sys, struct
NAME="recurrent_scan__mha_block_cached__geglu_ffn__decode_kernel"
def f2u(x): return struct.unpack("<I",struct.pack("<f",x))[0]

def gen(D=20, PROF=0, XF="", WF="", SLEEP=0, WD=0, NOFF=0, NOWO=0, TR=4, D2=48, T2=112, ROT=1, ROTS=14, SFL="sc1", LFL="sc1", YF="sc1 nt", TOUCH=0, SCHED=None, NOQ=0, QW=10, WO0=72, E0=2, NOY=0, QL=1, MP=1, WDT=3, YS="sc1", YL="sc1", DX=0, TX=64, WQD=10, BAR=0, WOS=0, ST=0, PF=0, PFW=0, PFE=0, PFF='', HWV=2, name=NAME):
    L=[]
    def A(s):
        for ln in s.split("\n"):
            ln=ln.strip()
            if ln.endswith(" sc1"): ln=ln[:-3]+(SFL if "store" in ln else LFL)
            if ln.endswith(" YF"): ln=ln[:-2]+(((YS or YF) if "store" in ln else (YL or YF)))
            if ln: L.append(("" if ln.endswith(":") else "    ")+ln)
    NS=8; SLOT=16384
    PBUF=NS*SLOT; RED=PBUF+4096; FL=RED+16384
    O_READY=0; O_DONE=256; O_QF=288; O_WFLAG=320; O_WMAX=384; O_WSUM=448; O_H=512
    XN=FL+1024; XS=960
    LDS=XN+8*XS
    QX=4096; RECB=262144
    RECSZ=2304; R_Z=0; R_ML=1792; R_Y=2048; HX=RECB-65536
    TG=80
    PROFBASE=4<<20
    W=40
    def w(i,n=4): return f"v[{W+i}:{W+i+n-1}]"
    def v(i,n): return f"v[{i}:{i+n-1}]"
    C1=f2u(1.4426950408889634/16.0)
    hdr=open("recurrent_scan__mha_block_cached__geglu_ffn__decode.s.ref").read().split("; Override")[0]
    L.append(hdr.rstrip())
    L.append(f"; @launch grid=(256,1,1) block=(576,1,1) lds={LDS}")
    L.append('.amdgcn_target "amdgcn-amd-amdhsa--gfx950"\n.text')
    L.append(f".globl {name}\n.p2align 8\n.type {name},@function\n{name}:")
    def stamp(k):
        if PROF: A(f"s_memrealtime s[{64+2*k}:{65+2*k}]")
    def srd(d,ptr,size):
        A(f"s_mov_b32 s{d}, s{ptr}\ns_mov_b32 s{d+1}, s{ptr+1}\ns_mov_b32 s{d+2}, {size}\ns_mov_b32 s{d+3}, 0x20000")
    lab=[0]
    def newlab(p):
        lab[0]+=1; return f"L_{p}{lab[0]}"
    def wd():
        if WD: A("s_sub_u32 s61, s61, 1\ns_cbranch_scc1 L_end")
    def setflag(off,val):
        A(f"v_mov_b32 v1, {val}\ns_mov_b64 exec, 1\nds_write_b32 v9, v1 offset:{off}\ns_mov_b64 exec, -1")
    def waitflag(off,val,sleep=0):
        a=newlab("w"); b=newlab("wd")
        A(f"""{a}:
        ds_read_b32 v1, v8 offset:{off}
        s_waitcnt lgkmcnt(0)
        v_cmp_gt_i32 vcc, {val}, v1
        s_cbranch_vccz {b}""")
        if sleep: A(f"s_sleep {sleep}")
        wd()
        A(f"s_branch {a}\n{b}:")
    def allred(op,x,t,rows=True,cross=True):
        for m in ("quad_perm:[1,0,3,2]","quad_perm:[2,3,0,1]","row_half_mirror")+(("row_mirror",) if rows else ()):
            A(f"s_nop 1\n{op}_dpp v{x}, v{x}, v{x} {m} row_mask:0xf bank_mask:0xf")
        if cross:
            for p in ("v_permlane16_swap_b32","v_permlane32_swap_b32"):
                A(f"v_mov_b32 v{t}, v{x}\ns_nop 1\n{p} v{x}, v{t}\ns_nop 1\n{op} v{x}, v{x}, v{t}")
    def tag(x):
        for r in range(4): A(f"v_mov_b32_sdwa v{x+r}, s{TG+r} dst_sel:BYTE_0 dst_unused:UNUSED_PRESERVE src0_sel:BYTE_0")
        A("s_nop 0")
    def untag(x,n,t,quad=False):
        for r in range(n): A(f"v_xor_b32 v{x+r}, s{TG+(r&3)}, v{x+r}")
        A(f"v_or3_b32 v{t}, v{x}, v{x+1}, v{x+2}")
        for r in range(3,n-1,2): A(f"v_or3_b32 v{t}, v{t}, v{x+r}, v{x+r+1}")
        A(f"v_or_b32 v{t}, v{t}, v{x+n-1}")
        if quad:
            for m in ("[1,0,3,2]","[2,3,0,1]"): A(f"s_nop 1\nv_or_b32_dpp v{t}, v{t}, v{t} quad_perm:{m} row_mask:0xf bank_mask:0xf")
        A(f"v_and_b32 v{t}, 0xff, v{t}\nv_cmp_ne_u32 vcc, 0, v{t}")
    def ltag(x,sh):
        A(f"v_bfe_u32 v{x}, v0, {sh}, 2\nv_lshlrev_b32 v{x}, 3, v{x}\nv_bfe_u32 v{x}, s84, v{x}, 8")
    def rnd(x,t=None):
        A(f"v_cvt_pk_bf16_f32 v{x}, v{x}, v{x}\nv_and_b32 v{x}, 0xffff0000, v{x}")

    A(f"""s_cmp_ge_u32 s2, 256
    s_cbranch_scc1 L_end
    s_load_dwordx4 s[36:39], s[0:1], 8
    s_load_dwordx2 s[32:33], s[0:1], 0
    s_load_dwordx4 s[40:43], s[0:1], 24
    s_load_dwordx8 s[44:51], s[0:1], 48
    s_load_dwordx4 s[52:55], s[0:1], 80""")
    stamp(0)
    if WD: A(f"s_mov_b32 s61, {WD}")
    A(f"""v_lshrrev_b32 v1, 6, v0
    v_and_b32 v0, 63, v0
    v_readfirstlane_b32 s3, v1
    s_and_b32 s6, s2, 7
    s_lshl_b32 s6, s6, 2
    s_lshr_b32 s7, s2, 6
    s_add_u32 s6, s6, s7
    s_bfe_u32 s5, s2, 0x30003
    s_lshl_b32 s7, s5, 5
    s_add_u32 s7, s7, s6
    s_cmp_lg_u32 s3, 0
    s_cbranch_scc1 L_worker""")
    A("s_setprio 3")
    A(f"""v_lshlrev_b32 v8, 2, v0
    v_add_u32 v8, {FL}, v8
    v_mov_b32 v1, 0
    ds_write_b32 v8, v1 offset:0
    ds_write_b32 v8, v1 offset:256
    v_and_b32 v9, 7, v0
    v_lshlrev_b32 v9, 2, v9
    v_add_u32 v9, {FL}, v9""")
    A("""v_lshrrev_b32 v1, 5, v0
    v_lshlrev_b32 v2, 4, v0
    v_lshlrev_b32 v1, 5, v1
    v_xor_b32 v4, v2, v1
    v_xor_b32 v5, 64, v4
    v_xor_b32 v6, 0x80, v4
    v_xor_b32 v7, 0xc0, v4
    s_lshl_b32 s24, s7, 20
    s_waitcnt lgkmcnt(0)
    s_add_u32 s8, s36, s24
    s_addc_u32 s9, s37, 0
    s_mov_b32 s10, 0x100000
    s_mov_b32 s11, 0x20000
    s_add_u32 s12, s38, s24
    s_addc_u32 s13, s39, 0""")
    if SCHED is None: SCHED=[(D,T2),(D2,128)] if D2 else [(D,128)]
    sfl=[SCHED[0][2] if len(SCHED[0])>2 else "nt"]
    def ld(i): A(f"buffer_load_dwordx4 v{4+i}, s[8:11], s26 offen offset:{i*1024} {sfl[0]} lds")
    for q in range(4):
        if q==0: A(f"s_mul_i32 s26, s2, {ROT}\ns_lshl_b32 s26, s26, {ROTS}\ns_mov_b32 m0, 0\ns_and_b32 s26, s26, 0xfffff")
        else: A(f"s_add_u32 s26, s26, 4096\ns_mov_b32 m0, {q*4096}\ns_and_b32 s26, s26, 0xfffff")
        for i in range(4): ld(i)
        if q==BAR: A("s_barrier")
    A(f"""s_mov_b32 s25, 1
    s_mov_b32 s27, {SLOT}
    s_mov_b32 s29, 0
    v_mov_b32 v10, 0""")
    if PROF: A("s_mov_b32 s30, 0")
    if PROF: A("s_memrealtime s[70:71]\nv_mov_b32 v20, 0")
    def ldloop(nm,Dd,tend):
        lagi=(Dd+15)%16; lags=(Dd+15)//16
        A(f"""L_ld_loop{nm}:
        s_sub_u32 s28, s25, {NS-1}
        s_waitcnt lgkmcnt(0)""")
        if PROF: A("s_lshr_b32 m0, s25, 1\nv_writelane_b32 v20, s70, m0")
        A(f"""v_cmp_gt_i32 vcc, s28, v10
        s_cbranch_vccz L_ld_go{nm}
        L_ld_spin{nm}:""")
        if PROF: A("s_add_u32 s30, s30, 1")
        wd()
        A(f"""ds_read_b32 v10, v9 offset:{O_DONE}
        s_waitcnt lgkmcnt(0)
        v_cmp_gt_i32 vcc, s28, v10
        s_cbranch_vccnz L_ld_spin{nm}
        L_ld_go{nm}:""")
        for q in range(4):
            A(f"s_add_u32 s26, s26, 4096\ns_add_u32 m0, s27, {q*4096}\ns_and_b32 s26, s26, 0xfffff")
            for i in range(4):
                A(f"s_waitcnt vmcnt({Dd-1})")
                ld(i)
                if q*4+i==lagi:
                    A(f"s_sub_u32 s28, s25, {lags-1}\ns_max_i32 s29, s29, s28\nv_mov_b32 v2, s29\nds_write_b32 v8, v2 offset:{O_READY}")
                if q*4+i==14:
                    A(f"ds_read_b32 v10, v9 offset:{O_DONE}")
                    if PROF: A("s_memrealtime s[70:71]")
        A(f"""s_add_u32 s25, s25, 1
        s_add_u32 s27, s27, {SLOT}
        s_and_b32 s27, s27, {NS*SLOT-1}
        s_cmp_eq_u32 s25, 64
        s_cselect_b32 s8, s12, s8
        s_cselect_b32 s9, s13, s9
        s_cmp_lt_u32 s25, {tend}
        s_cbranch_scc1 L_ld_loop{nm}""")
        return lags
    if DX:
        A("s_cmp_lt_u32 s6, 28\ns_cbranch_scc1 L_ld_loopa")
        ldloop("x",DX,TX)
    for k,sc in enumerate(SCHED):
        Dl,te=sc[:2]; sfl[0]=sc[2] if len(sc)>2 else "nt"
        lags=ldloop("abcdefgh"[k],Dl,te)
    for u in range(128-lags,128):
        A(f"v_mov_b32 v2, {u+1}\ns_waitcnt vmcnt({min(Dl-1,16*(127-u))})\nds_write_b32 v8, v2 offset:{O_READY}")
    if PROF:
        stamp(1)
        srd(20,54,0x40000000)
        A(f"""s_waitcnt lgkmcnt(0)
        s_lshl_b32 s24, s2, 8
        s_add_u32 s24, s24, {PROFBASE}
        v_mov_b32 v4, s64
        v_mov_b32 v5, s66
        v_mov_b32 v6, s30
        s_getreg_b32 s31, hwreg(HW_REG_XCC_ID)
        v_mov_b32 v7, s31
        v_mov_b32 v1, 0
        v_lshlrev_b32 v2, 2, v0
        s_add_u32 s25, s24, 65536
        buffer_store_dword v20, v2, s[20:23], s25 offen
        s_mov_b64 exec, 1
        buffer_store_dwordx4 v[4:7], v1, s[20:23], s24 offen""")
    A("s_waitcnt lgkmcnt(0)\ns_endpgm")
    def sweep(mask,early):
        A(f"""s_and_b32 s24, s2, 7
        s_lshl_b32 s24, s24, 5
        s_lshr_b32 s25, s2, 3
        s_add_u32 s24, s24, s25
        s_mul_i32 s25, s24, 6272
        s_mul_i32 s24, s24, 14336
        s_cmp_ge_u32 s4, 5
        s_cselect_b32 s88, s40, s42
        s_cselect_b32 s89, s41, s43
        s_mov_b32 s90, 7168
        s_mov_b32 s91, 0x20000
        s_bitcmp1_b32 s4, 0
        s_cselect_b32 s85, 7168, 0
        s_add_u32 s24, s24, s85""")
        for c,pt in ((0,44),(1,46),(2,48)):
            A(f"""s_cmp_eq_u32 s4, {c}
            s_cselect_b32 s88, s{pt}, s88
            s_cselect_b32 s89, s{pt+1}, s89
            s_cselect_b32 s90, 6272, s90
            s_cselect_b32 s24, s25, s24""")
        A(f"""s_add_u32 s88, s88, s24
        s_addc_u32 s89, s89, 0
        v_lshlrev_b32 v2, 4, v0
        v_add_u32 v38, 4096, v2
        s_lshr_b32 s24, {mask}, s4
        s_bitcmp1_b32 s24, 0""")
        if early: A("s_cselect_b32 s90, s90, 0")
        else: A("s_cbranch_scc0 L_nopf")
        if PFW and not early: waitflag(O_READY,PFW,SLEEP)
        for i in range(7): A(f"buffer_load_dwordx4 {w(96)}, v{38 if i>3 else 2}, s[88:91], 0 offen offset:{(i&3)*1024} {PFF}")
        if not early: A("L_nopf:")
    A(f"""L_worker:
    s_sub_u32 s4, s3, 1
    v_lshlrev_b32 v12, 4, v0
    s_mul_i32 s24, s4, 896
    s_mov_b32 s10, 896
    s_mov_b32 s11, 0x20000
    s_waitcnt lgkmcnt(0)
    s_add_u32 s8, s32, s24
    s_addc_u32 s9, s33, 0
    s_load_dword s84, s[54:55], 0
    buffer_load_dwordx4 v[16:19], v12, s[8:11], 0 offen {XF}
    s_barrier""")
    srd(12,40,448*4096*2)
    A("s_mov_b32 s27, 0\ns_mov_b32 s26, 0\nv_mov_b32 v21, 0\ns_cmp_lg_u32 s4, 7\ns_cbranch_scc1 L_nowq")
    A(f"""v_lshrrev_b32 v2, 1, v0
    v_and_b32 v3, 1, v0
    v_lshlrev_b32 v2, 13, v2
    v_lshl_add_u32 v21, v3, 4, v2
    s_and_b32 s26, s2, 7
    s_lshl_b32 s26, s26, 10
    s_lshr_b32 s27, s2, 3
    s_lshl_b32 s27, s27, 5
    s_mov_b32 m0, {RED}
    s_add_u32 s26, s26, s27""")
    def wqld(i0,i1):
        for i in range(i0,i1):
            if not NOQ&1: A(f"buffer_load_dwordx4 v21, s[12:15], s26 offen {WF} lds")
            if i<13: A(f"s_mov_b32 m0, {RED+(i+1)*1024}\ns_add_u32 s26, s26, {32*8192}")
    wqld(0,14-WQD)
    if TOUCH:
        A("s_branch L_notouch\nL_nowq:")
        A(f"""s_lshl_b32 s24, s7, 20
        s_mov_b32 s25, 0x80000
        s_mov_b32 s12, s38
        s_mov_b32 s13, s39
        s_mov_b32 s14, 0x10000000""")
        def sel(c,ptr,size,o0,o1):
            A(f"""s_cmp_eq_u32 s4, {c}
            s_cselect_b32 s12, s{ptr}, s12
            s_cselect_b32 s13, s{ptr+1}, s13
            s_cselect_b32 s14, {size}, s14
            s_cselect_b32 s24, {o0}, s24
            s_cselect_b32 s25, {o1}, s25""")
        A(f"s_mul_i32 s26, s6, 112\ns_mul_i32 s27, s6, {56*896}\ns_lshr_b32 s28, s6, 1\ns_mul_i32 s28, s28, {256*896}\ns_mul_i32 s29, s5, 896")
        sel(1,44,448*1792*2,"s26",447*3584)
        sel(2,46,448*1792*2,"s26",447*3584)
        sel(3,48,448*1792*2,"s27",55*896)
        sel(4,42,448*4096*2,"s28",255*896)
        sel(5,50,8*896,"s29",512)
        sel(6,54,0x40000000,RECB-4096,256*RECSZ+8192)
        A(f"""v_mul_lo_u32 v2, v0, s25
        s_mov_b64 exec, 3
        buffer_load_dword v{W+119}, v2, s[12:15], s24 offen nt
        s_mov_b64 exec, -1
        L_notouch:""")
    elif PFE:
        A("s_branch L_nosw\nL_nowq:"); sweep(PFE,True); A("L_nosw:")
    else: A("L_nowq:")
    A(f"""s_mul_i32 s24, s7, {RECSZ}
    s_add_u32 s24, s24, {RECB}
    s_add_u32 s16, s54, s24
    s_addc_u32 s17, s55, 0
    s_mov_b32 s18, {RECSZ}
    s_mov_b32 s19, 0x20000""")
    srd(20,54,0x40000000)
    A(f"""v_and_b32 v3, 15, v0
    v_and_b32 v1, 1, v3
    v_cmp_eq_u32 vcc, 1, v1
    v_mov_b32 v14, 0xffff
    v_mov_b32 v15, 0xffff0000
    v_cndmask_b32 v14, v14, v15, vcc
    v_lshrrev_b32 v1, 1, v3""")
    for r in range(4):
        A(f"v_cmp_eq_u32 vcc, {r}, v1\ns_nop 1\nv_cndmask_b32 v{4+r}, 0, v14, vcc")
    A(f"""v_and_b32 v8, 7, v0
    v_lshlrev_b32 v8, 2, v8
    v_add_u32 v8, {FL}, v8
    s_lshl_b32 s25, s4, 2
    s_add_u32 s25, s25, {FL}
    v_mov_b32 v9, s25
    v_add_u32 v10, {RED}, v12
    s_lshl_b32 s25, s4, 10
    v_add_u32 v11, s25, v10
    s_mul_i32 s25, s4, {XS}
    s_add_u32 s25, s25, {XN}
    v_add_u32 v12, s25, v12""")
    setflag(O_DONE,"s4")
    KA=W+124
    A(f"""v_lshrrev_b32 v2, 4, v0
    v_and_b32 v3, 7, v0
    v_lshlrev_b32 v13, 4, v2
    v_add_u32 v13, {PBUF}, v13
    v_lshlrev_b32 v3, 1, v3
    v_xor_b32 v3, v3, v2
    v_lshlrev_b32 v3, 4, v3
    v_and_b32 v2, 15, v0
    v_lshl_add_u32 v3, v2, 9, v3
    s_lshl_b32 s25, s4, 14
    v_add_u32 v{KA}, s25, v3
    v_xor_b32 v{KA+1}, 64, v{KA}
    v_xor_b32 v{KA+2}, 0x80, v{KA}
    v_xor_b32 v{KA+3}, 0xc0, v{KA}""")
    A("""s_cmp_lg_u32 s4, 7
    s_cbranch_scc1 L_xw0
    s_waitcnt vmcnt(""" + ("0" if NOQ&1 else str(14-WQD)) + """)""")
    wqld(14-WQD,14)
    A("""s_branch L_xw1
    L_xw0:
    s_waitcnt vmcnt(""" + str(1 if TOUCH else 7 if PFE else 0) + """)
    L_xw1:""")
    for k in range(4):
        A(f"v_lshlrev_b32 v{32+2*k}, 16, v{16+k}\nv_and_b32 v{33+2*k}, 0xffff0000, v{16+k}")
    A("v_add_f32 v1, v32, v33")
    for k in range(2,8): A(f"v_add_f32 v1, v1, v{32+k}")
    allred("v_add_f32",1,2)
    A(f"v_mul_f32 v1, {f2u(1.0/448)}, v1\nv_mov_b32 v3, 0")
    for k in range(8): A(f"v_sub_f32 v2, v{32+k}, v1\nv_fmac_f32 v3, v2, v2")
    A("v_cmp_gt_u32 vcc, 56, v0\ns_nop 1\nv_cndmask_b32 v3, 0, v3, vcc")
    allred("v_add_f32",3,2)
    A(f"v_mul_f32 v3, {f2u(1.0/448)}, v3")
    rnd(1); rnd(3)
    A(f"v_add_f32 v3, {f2u(1e-5)}, v3"); rnd(3)
    A("v_sqrt_f32 v3, v3\ns_nop 0"); rnd(3)
    A("v_rcp_f32 v2, v3\ns_nop 0")
    A("v_fma_f32 v14, -v3, v2, 1.0\nv_fmac_f32 v2, v14, v2")
    for k in range(8): A(f"v_sub_f32 v{32+k}, v{32+k}, v1")
    for k in range(8): rnd(32+k)
    for k in range(8): A(f"v_mul_f32 v{24+k}, v{32+k}, v2")
    for k in range(8): A(f"v_fma_f32 v{32+k}, -v{24+k}, v3, v{32+k}")
    for k in range(8): A(f"v_fmac_f32 v{24+k}, v{32+k}, v2")
    for k in range(4): A(f"v_cvt_pk_bf16_f32 v{16+k}, v{24+2*k}, v{25+2*k}")
    A(f"""s_mov_b32 exec_hi, 0x00ffffff
    ds_write_b128 v12, v[16:19]
    s_mov_b32 exec_hi, -1
    s_waitcnt lgkmcnt(0)
    s_add_u32 s84, s84, 0x01010101
    s_and_b32 s{TG}, s84, 0xff
    s_bfe_u32 s{TG+1}, s84, 0x80008
    s_bfe_u32 s{TG+2}, s84, 0x80010
    s_lshr_b32 s{TG+3}, s84, 24""")
    setflag(O_WFLAG,1)
    if ST:
        A(f"""s_lshr_b32 s24, s2, 3
        s_lshl_b32 s24, s24, 3
        s_add_u32 s24, s24, s4
        s_add_u32 s25, s24, 256
        s_min_u32 s25, s25, 391
        s_lshl_b32 s25, s25, 12
        s_min_u32 s85, s24, 111
        s_lshl_b32 s24, s24, 12
        s_and_b32 s86, s2, 7
        s_mul_i32 s86, s86, 112
        s_add_u32 s85, s85, s86
        s_lshl_b32 s85, s85, 12
        s_load_dword s86, s[44:45], s24
        s_load_dword s87, s[44:45], s25
        s_load_dword s88, s[46:47], s24
        s_load_dword s89, s[46:47], s25
        s_load_dword s90, s[48:49], s24
        s_load_dword s91, s[48:49], s25
        s_load_dword s92, s[42:43], s85""")
    A("s_cmp_lg_u32 s4, 7\ns_cbranch_scc1 L_noq")
    A(f"""v_lshrrev_b32 v2, 4, v0
    v_and_b32 v3, 15, v0
    v_lshlrev_b32 v14, 8, v2
    v_lshl_add_u32 v14, v3, 3, v14
    v_add_u32 v14, {RED}, v14
    v_and_b32 v1, 7, v0
    v_mul_u32_u24 v15, {XS}, v1
    v_lshl_add_u32 v15, v2, 4, v15
    v_add_u32 v15, {XN}, v15
    v_lshlrev_b32 v3, {6 if QL else 14}, v3
    v_lshl_add_u32 v2, v2, 4, v3
    s_and_b32 s24, s2, 7
    s_lshl_b32 s24, s24, {14 if QL else 11}
    s_lshr_b32 s25, s2, 3
    s_lshl_b32 s25, s25, {9 if QL else 6}
    s_add_u32 s24, s24, s25
    s_add_u32 s24, s24, {QX}""")
    if QL: A(f"""s_lshr_b32 s25, s6, 1
    s_lshl_b32 s25, s25, 13
    s_lshl_b32 s26, s5, 6
    s_add_u32 s25, s25, s26
    s_add_u32 s25, s25, {QX}
    v_lshrrev_b32 v1, 2, v0
    v_and_b32 v3, 3, v0
    v_lshlrev_b32 v3, 4, v3
    v_lshl_add_u32 v3, v1, 9, v3""")
    else: A(f"""s_lshr_b32 s25, s7, 1
    s_lshl_b32 s25, s25, 10
    s_add_u32 s25, s25, {QX}
    v_lshlrev_b32 v3, 4, v0""")
    waitflag(O_WFLAG,1)
    for st in range(14): A(f"ds_read_b128 {w(st*4)}, v15 offset:{st*64}")
    A("s_waitcnt vmcnt(0) lgkmcnt(0)")
    def trr(st):
        A(f"ds_read_b64_tr_b16 {w(56+st*4,2)}, v14 offset:{st*1024}\nds_read_b64_tr_b16 {w(58+st*4,2)}, v14 offset:{st*1024+128}")
    for st in range(7): trr(st)
    for st in range(14):
        A(f"s_waitcnt lgkmcnt({min(12,2*(13-st))})")
        c="0" if st<2 else v(16+4*(st&1),4)
        A(f"v_mfma_f32_16x16x32_bf16 {v(16+4*(st&1),4)}, {w(56+st*4)}, {w(st*4)}, {c}")
        if st+7<14: trr(st+7)
    A("s_nop 7")
    for r in range(4): A(f"v_add_f32 v{16+r}, v{16+r}, v{20+r}")
    for r in range(4): rnd(16+r)
    for r in range(4): A(f"v_or_b32 v{16+r}, s{TG+r}, v{16+r}")
    A(f"""s_mov_b32 exec_lo, 0x00ff00ff
    s_mov_b32 exec_hi, 0x00ff00ff
    {"" if NOQ&2 else "buffer_store_dwordx4 v[16:19], v2, s[20:23], s24 offen sc1"}
    s_mov_b64 exec, -1
    v_lshlrev_b32 v14, 3, v0
    v_add_u32 v14, {PBUF}, v14
    s_mov_b32 s26, 0x07060302
    s_mov_b32 s27, s25
    L_noq:""")
    SF=W+120
    A(f"""s_mov_b32 s28, 0
    s_add_u32 s29, s4, 1
    s_mov_b32 s30, 0x01010101
    s_mov_b32 s31, 0x01010101""")
    waitflag(O_READY,"s29",SLEEP)
    for half in range(2):
        for jj in range(4):
            for ab in range(2):
                A(f"ds_read_b128 {w(32+half*32+(jj*2+ab)*4)}, v{KA+jj} offset:{half*256+ab*8192}")
        if half==0: A("s_waitcnt lgkmcnt(4)")
    A("s_add_u32 s25, s4, 8")
    setflag(O_DONE,"s25")
    if PF&~PFE: sweep(PF&~PFE,False)
    A("s_cmp_lg_u32 s4, 7\ns_cbranch_scc1 L_noq2")
    if QW: waitflag(O_READY,QW,SLEEP)
    A("L_qp:")
    wd()
    if not NOQ&4: A("buffer_load_dwordx4 v[20:23], v3, s[20:23], s27 offen sc1\ns_waitcnt vmcnt(0)")
    untag(20,4,1)
    if NOQ:
        for r in range(4): A(f"v_mov_b32 v{20+r}, 0")
    A(f"""{"" if NOQ&6 else "s_cbranch_vccnz L_qp"}
    v_perm_b32 v20, v21, v20, s26
    v_perm_b32 v21, v23, v22, s26
    v_mov_b32 v1, 1
    ds_write_b64 v14, v[20:21]
    ds_write_b32 v8, v1 offset:{O_QF}
    L_noq2:""")
    waitflag(O_QF,1,SLEEP)
    stamp(1)
    for jj in range(8): A(f"ds_read_b128 {w(4*jj)}, v13 offset:{64*jj}")
    A("s_waitcnt lgkmcnt(0)")
    for half in range(2):
        for jj in range(4):
            for ab in range(2):
                c="0" if (half==0 and jj==0) else v(16+4*ab,4)
                A(f"v_mfma_f32_16x16x32_bf16 {v(16+4*ab,4)}, {w(32+half*32+(jj*2+ab)*4)}, {w((half*4+jj)*4)}, {c}")
    A("s_branch L_k_tail\nL_k_loop:")
    waitflag(O_READY,"s29",SLEEP)
    for half in range(2):
        for jj in range(4):
            for ab in range(2):
                A(f"ds_read_b128 {w(32+(jj*2+ab)*4)}, v{KA+jj} offset:{half*256+ab*8192}")
        for jj in range(4):
            for ab in range(2):
                A(f"s_waitcnt lgkmcnt({7-jj*2-ab})")
                c="0" if (half==0 and jj==0) else v(16+4*ab,4)
                A(f"v_mfma_f32_16x16x32_bf16 {v(16+4*ab,4)}, {w(32+(jj*2+ab)*4)}, {w((half*4+jj)*4)}, {c}")
    A("L_k_tail:")
    A(f"""s_add_u32 s29, s29, 8
    s_sub_u32 s25, s29, 1
    s_min_u32 s25, s25, 64""")
    setflag(O_DONE,"s25")
    A("s_nop 3\ns_mov_b64 exec, s[30:31]")
    for k in range(4): A(f"v_cvt_pk_bf16_f32 v{SF+k}, v{16+2*k}, v{17+2*k}")
    A(f"""s_mov_b64 exec, -1
    s_lshl_b64 s[30:31], s[30:31], 1
    s_add_u32 s28, s28, 1
""")
    A("s_cmp_ge_u32 s6, 28\ns_cbranch_scc1 L_k_noev")
    for e in range(1,5): A(f"s_cmp_eq_u32 s28, {e+E0-1}\ns_cbranch_scc1 L_ev1_{e}")
    A(f"""s_cmp_eq_u32 s28, {E0+4}
    s_cbranch_scc1 L_ev2
    s_cmp_eq_u32 s28, {E0+5}
    s_cbranch_scc1 L_ev3
    L_k_noev:
    s_cmp_lt_u32 s28, 8
    s_cbranch_scc1 L_k_loop
    s_branch L_mid""")
    A("L_ev1_1:")
    srd(12,44,448*1792*2)
    A(f"""v_lshrrev_b32 v2, 4, v0
    v_and_b32 v3, 7, v0
    v_mul_u32_u24 v2, {14*3584}, v2
    v_lshl_add_u32 v2, v3, 4, v2
    s_mul_i32 s24, s4, {56*3584}
    s_lshl_b32 s25, s6, 7
    s_add_u32 s24, s24, s25
    s_mov_b32 s27, s24""")
    for e in range(4):
        if e and TR: A(f"L_ev1_{e+1}:")
        if e==2: A("s_mov_b32 s12, s46\ns_mov_b32 s13, s47")
        m="0x00ff00ff" if e<2 else "0xff00ff00"
        sr=27 if e<2 else 24
        A(f"s_mov_b32 exec_lo, {m}\ns_mov_b32 exec_hi, {m}")
        for i in range(7*(e&1),7*(e&1)+7):
            if not NOFF: A(f"buffer_load_dwordx4 {w(64+4*i)}, v2, s[12:15], s{sr} offen {WF}\ns_add_u32 s{sr}, s{sr}, 3584")
        if TR or e==3: A("s_mov_b64 exec, -1\ns_branch L_k_loop")
    A(f"""L_ev2:
    v_lshrrev_b32 v2, 4, v0
    s_mul_i32 s24, s5, {XS}
    s_mul_i32 s25, s4, 112
    s_add_u32 s24, s24, s25
    s_add_u32 s24, s24, {XN}
    v_mul_u32_u24 v2, 28, v2
    v_add_u32 v2, s24, v2""")
    for k in range(7): A(f"ds_read_b32 v{24+k}, v2 offset:{4*k}")
    A("s_mov_b32 s24, 0x01000100\ns_mov_b32 s25, 0x03020302\ns_waitcnt lgkmcnt(0)")
    for k in range(6,-1,-1):
        A(f"v_perm_b32 v{25+2*k}, v{24+k}, v{24+k}, s25\nv_perm_b32 v{24+2*k}, v{24+k}, v{24+k}, s24")
    A("s_waitcnt vmcnt(0)")
    for i in range(14):
        bt=W+32+(i&1)*4
        for r in range(4): A(f"v_and_b32 v{bt+r}, v{4+r}, v{24+i}")
        c="0" if i==0 else v(16,4)
        A(f"s_nop 1\nv_mfma_f32_16x16x32_bf16 {v(16,4)}, {w(64+4*i)}, {v(bt,4)}, {c}")
    srd(12,48,1792*448*2)
    A(f"""v_lshrrev_b32 v2, 3, v0
    v_and_b32 v3, 7, v0
    v_mul_u32_u24 v2, 896, v2
    v_lshl_add_u32 v38, v3, 4, v2
    s_and_b32 s24, s6, 3
    s_lshl_b32 s24, s24, 3
    s_add_u32 s24, s24, s4
    s_mul_i32 s24, s24, {56*896}
    s_lshr_b32 s25, s6, 2
    s_lshl_b32 s25, s25, 7
    s_add_u32 s62, s24, s25
    ds_write_b128 v11, v[16:19] offset:8192""")
    setflag(O_WFLAG,2)
    def wdld(i0,i1):
        for i in range(i0,i1):
            if not NOFF: A(f"buffer_load_dwordx4 {w(64+4*i)}, v38, s[12:15], s62 offen {WF}\ns_add_u32 s62, s62, {8*896}")
    wdld(0,7-WDT)
    A("s_branch L_k_loop")
    A("L_ev3:")
    wdld(7-WDT,7)
    A("s_cmp_lg_u32 s4, 0\ns_cbranch_scc1 L_k_loop")
    waitflag(O_WFLAG,2,SLEEP)
    for c in range(8): A(f"ds_read_b128 {w(32+4*c)}, v10 offset:{8192+c*1024}")
    A("s_waitcnt lgkmcnt(0)")
    for c in range(1,8):
        for r in range(4): A(f"v_add_f32 v{W+32+r}, v{W+32+r}, v{W+32+4*c+r}")
    A(f"""v_lshrrev_b32 v2, 4, v0
    v_and_b32 v2, 1, v2
    v_and_b32 v3, 7, v0
    v_lshlrev_b32 v3, 2, v3
    v_lshl_add_u32 v3, v2, 7, v3
    v_add_u32 v3, {FL+O_H}, v3""")
    K0=f2u(-2*0.7978845608028654*1.4426950408889634); K1=f2u(0.044715)
    for r in range(4):
        x=W+32+r; u=W+36; t=W+37
        rnd(x)
        A(f"""v_mov_b32 v{u}, v{x}
        s_nop 1
        v_permlane32_swap_b32 v{x}, v{u}
        s_nop 1
        v_mul_f32 v{t}, v{x}, v{x}
        v_mul_f32 v{t}, {K1}, v{t}
        v_fma_f32 v{t}, v{t}, v{x}, v{x}
        v_mul_f32 v{t}, {K0}, v{t}
        v_exp_f32 v{t}, v{t}
        s_nop 0
        v_add_f32 v{t}, 1.0, v{t}
        v_rcp_f32 v{t}, v{t}
        s_nop 0
        v_mul_f32 v{x}, v{x}, v{t}""")
        rnd(x)
        A(f"v_mul_f32 v{x}, v{x}, v{u}"); rnd(x)
    A("s_mov_b32 exec_lo, 0x00ff00ff\ns_mov_b32 exec_hi, 0")
    for r in range(4): A(f"ds_write_b32 v3, v{W+32+r} offset:{32*r}")
    A(f"""s_mov_b64 exec, -1
    v_lshlrev_b32 v3, 2, v0
    v_add_u32 v2, {FL+O_H}, v3
    s_waitcnt lgkmcnt(0)
    ds_read_b32 v2, v2
    s_lshl_b32 s24, s7, 8
    s_add_u32 s24, s24, {HX}""")
    ltag(1,0)
    A(f"""s_waitcnt lgkmcnt(0)
    v_or_b32 v2, v2, v1
    {"" if NOY&1 else "buffer_store_dword v2, v3, s[20:23], s24 offen YF"}
    s_branch L_k_loop""")
    A("L_mid:")
    stamp(2)
    for k in range(4):
        A(f"v_lshlrev_b32 v{24+2*k}, 16, v{SF+k}\nv_and_b32 v{25+2*k}, 0xffff0000, v{SF+k}")
    A("""v_max3_f32 v3, v24, v25, v26
    v_max3_f32 v3, v3, v27, v28
    v_max3_f32 v3, v3, v29, v30
    v_max_f32 v3, v3, v31""")
    allred("v_max_f32",3,2)
    A(f"s_mov_b64 exec, 1\nds_write_b32 v9, v3 offset:{O_WMAX}\ns_mov_b64 exec, -1")
    setflag(O_WFLAG,3)
    A(f"""s_cmp_lg_u32 s4, {HWV}
    s_cbranch_scc1 L_noh
    s_cmp_ge_u32 s6, 28
    s_cbranch_scc1 L_noh
    v_lshlrev_b32 v2, 4, v0
    v_min_u32 v3, 47, v0
    v_lshlrev_b32 v3, 4, v3
    s_and_b32 s25, s6, 3
    s_mul_i32 s25, s25, 1792
    s_lshl_b32 s24, s5, 13
    s_add_u32 s24, s24, s25
    s_add_u32 s24, s24, {HX}
    L_hp:""")
    wd()
    A(f"""buffer_load_dwordx4 {w(0)}, v2, s[20:23], s24 offen YF
    buffer_load_dwordx4 {w(4)}, v3, s[20:23], s24 offen offset:1024 YF
    s_waitcnt vmcnt(0)""")
    untag(W,8,1)
    A(f"""{"" if NOY&1 else "s_cbranch_vccnz L_hp"}
    ds_write_b128 v10, {w(0)} offset:4096
    ds_write_b128 v10, {w(4)} offset:5120
    L_noh:""")
    A(f"""v_lshrrev_b32 v2, 4, v0
    v_lshlrev_b32 v13, 4, v2
    v_add_u32 v13, {PBUF}, v13
    v_and_b32 v3, 7, v0
    v_lshl_add_u32 v12, v3, 9, v13
    s_lshl_b32 s25, s4, 6
    v_add_u32 v12, s25, v12""")
    waitflag(O_WFLAG,3)
    A(f"ds_read_b32 v3, v8 offset:{O_WMAX}\ns_waitcnt lgkmcnt(0)")
    allred("v_max_f32",3,2,rows=False,cross=False)
    A(f"""s_mov_b32 s26, {C1}
    v_mul_f32 v2, s26, v3
    v_readfirstlane_b32 s56, v3""")
    for k in range(8): A(f"v_fma_f32 v{24+k}, v{24+k}, s26, -v2")
    for k in range(8): A(f"v_exp_f32 v{24+k}, v{24+k}")
    A("v_add_f32 v3, v24, v25")
    for k in range(2,8): A(f"v_add_f32 v3, v3, v{24+k}")
    for k in range(4): A(f"v_cvt_pk_bf16_f32 v{32+k}, v{24+2*k}, v{25+2*k}")
    A("s_mov_b32 exec_lo, 0x00ff00ff\ns_mov_b32 exec_hi, 0x00ff00ff\nds_write_b128 v12, v[32:35]\ns_mov_b64 exec, -1")
    allred("v_add_f32",3,2)
    A(f"v_mul_f32 v3, 0.5, v3\ns_mov_b64 exec, 1\nds_write_b32 v9, v3 offset:{O_WSUM}\ns_mov_b64 exec, -1")
    setflag(O_WFLAG,4)
    A(f"""v_bfe_u32 v3, v0, 2, 4
    v_and_b32 v1, 7, v3
    s_lshl_b32 s25, s4, 1
    v_xor_b32 v1, s25, v1
    v_lshlrev_b32 v1, 5, v1
    v_lshl_add_u32 v1, v3, 9, v1
    v_and_b32 v3, 3, v0
    v_lshl_add_u32 v11, v3, 3, v1
    v_xor_b32 v12, 32, v11""")
    waitflag(O_WFLAG,4)
    A(f"ds_read_b32 v3, v8 offset:{O_WSUM}\ns_waitcnt lgkmcnt(0)")
    allred("v_add_f32",3,2,rows=False,cross=False)
    A(f"""s_nop 0
    v_readfirstlane_b32 s57, v3
    s_cmp_lg_u32 s4, 3
    s_cbranch_scc1 L_noml
    v_mov_b32 v24, s56
    v_mov_b32 v25, v3
    v_mov_b32 v26, 0
    v_mov_b32 v27, 0
    v_mov_b32 v1, {R_ML}""")
    tag(24)
    A(f"""s_mov_b64 exec, 1
    {"" if NOY&2 else "buffer_store_dwordx4 v[24:27], v1, s[16:19], 0 offen YF"}
    s_mov_b64 exec, -1
    L_noml:
    s_mov_b32 s28, 64
    s_cmp_ge_u32 s6, 28
    s_cbranch_scc1 L_noy""")
    A(f"""v_lshrrev_b32 v2, 3, v0
    s_mul_i32 s25, s4, 224
    s_add_u32 s25, s25, {RED+4096}
    v_lshl_add_u32 v2, v2, 2, s25""")
    for i in range(7): A(f"ds_read_b32 v{W+i}, v2 offset:{32*i}")
    A("s_waitcnt vmcnt(0) lgkmcnt(0)")
    for i in range(7):
        for d in range(4):
            A(f"v_lshlrev_b32 v{24+2*d}, 16, v{W+64+4*i+d}\nv_and_b32 v{25+2*d}, 0xffff0000, v{W+64+4*i+d}")
        for e in range(8): A(f"{'v_fmac_f32' if i else 'v_mul_f32'} v{16+e}, v{24+e}, v{W+i}")
    A("s_nop 1")
    for e in range(4): A(f"v_permlane32_swap_b32 v{16+e}, v{20+e}")
    A("s_nop 1")
    for e in range(4): A(f"v_add_f32 v{16+e}, v{16+e}, v{20+e}")
    A("s_nop 1")
    for e in range(2): A(f"v_permlane16_swap_b32 v{16+e}, v{18+e}")
    A("s_nop 1")
    for e in range(2): A(f"v_add_f32 v{16+e}, v{16+e}, v{18+e}")
    for r in (8,):
        A("s_nop 1")
        for e in range(2): A(f"v_add_f32_dpp v{16+e}, v{16+e}, v{16+e} row_ror:{r} row_mask:0xf bank_mask:0xf")
    A(f"""v_lshrrev_b32 v2, 4, v0
    v_and_b32 v3, 7, v0
    v_lshlrev_b32 v2, 3, v2
    v_lshl_add_u32 v2, v3, 5, v2
    s_lshl_b32 s25, s4, 8
    s_add_u32 s25, s25, {RED}
    v_add_u32 v2, s25, v2
    s_mov_b32 exec_lo, 0x00ff00ff
    s_mov_b32 exec_hi, 0x00ff00ff
    ds_write_b64 v2, v[16:17]
    s_mov_b64 exec, -1""")
    setflag(O_WFLAG,5)
    A(f"""s_cmp_lg_u32 s4, 1
    s_cbranch_scc1 L_noy
    v_lshlrev_b32 v2, 2, v0
    v_add_u32 v3, {RED}, v2""")
    waitflag(O_WFLAG,5)
    for c in range(4): A(f"ds_read2st64_b32 {v(16+2*c,2)}, v3 offset0:{2*c} offset1:{2*c+1}")
    ltag(1,0)
    A("v_mov_b32 v3, 0xffffff00\ns_waitcnt lgkmcnt(0)")
    for c in range(1,8): A(f"v_add_f32 v16, v16, v{16+c}")
    A(f"""v_and_or_b32 v16, v16, v3, v1
    {"" if NOY&4 else f"buffer_store_dword v16, v2, s[16:19], 0 offen offset:{R_Y} YF"}""")
    A("L_noy:")
    srd(12,42,4096*448*2)
    A(f"""v_lshrrev_b32 v2, 4, v0
    v_and_b32 v3, 15, v0
    v_mul_u32_u24 v2, {4*896}, v2
    v_lshl_add_u32 v2, v3, 4, v2
    v_cmp_gt_u32 vcc, 8, v3
    s_lshr_b32 s24, s6, 1
    s_lshl_b32 s24, s24, 3
    s_add_u32 s24, s24, s4
    s_mul_i32 s24, s24, {32*896}
    v_mov_b32 v3, 0x40000000
    v_cndmask_b32 v38, v3, v2, vcc""")
    def wold(a,r):
        for blk in range(4):
            if not NOWO: A(f"buffer_load_dwordx4 {w((a*4+r)*16+blk*4)}, v{38 if blk==3 else 39}, s[12:15], s62 offen offset:{r*896+blk*256} {WF}")
        if a==0 and r==3: A(f"s_add_u32 s62, s62, {16*896}")
    A("v_mov_b32 v39, v2\ns_mov_b32 s62, s24")
    for k in range(16,24): A(f"v_mov_b32 v{k}, 0")
    assert WO0+9*TR<=127
    A(f"s_mul_i32 s60, s4, {TR}\ns_lshr_b32 s60, s60, {0 if WOS else 3}\ns_add_u32 s60, s60, {WO0}\ns_mov_b32 s27, 0\ns_mov_b32 s63, 0")
    stamp(3)
    A(f"""L_v_loop:
    s_add_u32 s28, s28, 1
    v_add_u32 v2, s27, v11
    v_add_u32 v3, s27, v12
    ds_read_b128 v[32:35], v13""")
    waitflag(O_READY,"s28",SLEEP)
    A(f"""ds_read_b64_tr_b16 v[24:25], v2
    ds_read_b64_tr_b16 v[26:27], v2 offset:8192
    ds_read_b64_tr_b16 v[28:29], v3
    ds_read_b64_tr_b16 v[30:31], v3 offset:8192
    v_mov_b32 v1, s28
    v_add_u32 v13, 64, v13
    s_add_u32 s27, s27, {SLOT}
    s_and_b32 s27, s27, {NS*SLOT-1}
    s_mov_b64 exec, 1
    ds_write_b32 v9, v1 offset:{O_DONE}
    s_mov_b64 exec, -1
    s_waitcnt lgkmcnt(3)
    v_mfma_f32_16x16x32_bf16 v[16:19], v[24:27], v[32:35], v[16:19]
    s_waitcnt lgkmcnt(1)
    v_mfma_f32_16x16x32_bf16 v[20:23], v[28:31], v[32:35], v[20:23]
    s_cmp_lg_u32 s28, s60
    s_cbranch_scc1 L_v_loop
    s_cmp_lg_u32 s28, 128
    s_cbranch_scc1 L_vev""")
    stamp(4)
    A(f"""s_lshl_b32 s25, s4, 11
    v_add_u32 v2, s25, v10
    s_cmp_gt_u32 s4, 2
    s_subb_u32 s25, s4, 0
    s_nop 0""")
    for k in range(8): A(f"v_mul_f32 v{16+k}, v{16+k}, v15")
    for k in range(8): A(f"v_cvt_pk_bf16_f32 v{16+k}, v{16+k}, v{16+k}")
    def b1(s):
        for r in range(4): A(f"v_and_b32 v{32+r}, v{4+r}, v{16+s}")
    def b2(s):
        for r in range(4): A(f"v_and_b32_dpp v{36+r}, v{4+r}, v{16+s} row_ror:8 row_mask:0xf bank_mask:0xf")
    b1(0); b2(0)
    for s in range(8):
        for u in range(2):
            c="0" if s==0 else v(24+4*u,4)
            A(f"v_mfma_f32_16x16x32_bf16 {v(24+4*u,4)}, {w(s*16+u*8)}, v[32:35], {c}")
        if s<7: b1(s+1)
        for u in range(2):
            A(f"v_mfma_f32_16x16x32_bf16 {v(24+4*u,4)}, {w(s*16+u*8+4)}, v[36:39], {v(24+4*u,4)}")
        if s<7: b2(s+1)
    A(f"""s_lshr_b32 s24, s25, 2
    s_lshl_b32 s24, s24, 10
    s_bitcmp1_b32 s25, 0
    s_cselect_b32 s27, 512, 0
    s_add_u32 s24, s24, s27
    s_bitcmp1_b32 s25, 1
    s_cselect_b32 s27, 128, 0
    s_add_u32 s24, s24, s27
    s_add_u32 s24, s24, {RED}
    v_bfe_u32 v3, v0, 5, 1
    v_and_b32 v1, 7, v0
    v_lshlrev_b32 v3, 8, v3
    v_lshl_add_u32 v3, v1, 4, v3
    v_bfe_u32 v1, v0, 3, 2
    v_lshl_add_u32 v3, v1, 2, v3
    v_add_u32 v3, s24, v3
    ds_write_b128 v2, v[24:27]
    ds_write_b128 v2, v[28:31] offset:1024""")
    ltag(1,0)
    A(f"""s_lshl_b32 s25, s25, 8
    v_lshlrev_b32 v2, 2, v0
    s_cmp_eq_u32 s4, 2
    s_waitcnt lgkmcnt(0)
    s_barrier
    s_cbranch_scc1 L_final""")
    for c in range(4): A(f"ds_read2st64_b32 {v(16+2*c,2)}, v3 offset0:{16*c} offset1:{16*c+8}")
    A(f"""s_waitcnt lgkmcnt(2)
    v_add_f32 v16, v16, v17
    v_add_f32 v18, v18, v19
    s_waitcnt lgkmcnt(0)
    v_add_f32 v20, v20, v21
    v_add_f32 v22, v22, v23
    v_add_f32 v16, v16, v18
    v_add_f32 v20, v20, v22
    v_mov_b32 v3, 0xffffff00
    v_add_f32 v16, v16, v20
    v_and_or_b32 v16, v16, v3, v1
    {"" if NOY&8 else "buffer_store_dword v16, v2, s[16:19], s25 offen sc1"}""")
    stamp(5)
    A("s_branch L_exit")
    A("L_vev:")
    if WOS:
        A(f"s_add_u32 s60, s60, 1\ns_add_u32 s63, s63, 1")
        for e in range(WOS): A(f"s_cmp_eq_u32 s63, {e+1}\ns_cbranch_scc1 L_wo{e}")
        A("s_branch L_vev2")
        for e in range(WOS):
            A(f"L_wo{e}:")
            for k in range(e*8//WOS,(e+1)*8//WOS): wold(k>>2,k&3)
            if e==WOS-1: A(f"s_lshr_b32 s60, s4, 1\ns_add_u32 s60, s60, {WO0+7*TR+WOS}")
            A("s_branch L_v_loop")
        A("L_vev2:")
    elif TR:
        A(f"s_add_u32 s60, s60, {TR}\ns_add_u32 s63, s63, 1")
        for e in range(8): A(f"s_cmp_eq_u32 s63, {e+1}\ns_cbranch_scc1 L_wo{e}")
        A("s_branch L_vev2")
        for e in range(8):
            A(f"L_wo{e}:"); wold(e>>2,e&3); A("s_branch L_v_loop")
        A("L_vev2:")
    A(f"""s_mov_b32 s60, 128
    s_xor_b32 s24, s7, 1
    s_mul_i32 s24, s24, {RECSZ}
    v_mov_b32 v36, {RECB+R_ML}
    L_mlp:""")
    wd()
    A("buffer_load_dwordx4 v[28:31], v36, s[20:23], s24 offen YF\ns_waitcnt vmcnt(0)")
    untag(28,4,1)
    A(f"""{"" if NOY&2 else "s_cbranch_vccnz L_mlp"}
    v_mov_b32 v2, v28
    v_mov_b32 v3, v29
    v_max_f32 v24, s56, v2
    v_sub_f32 v25, s56, v24
    v_sub_f32 v2, v2, v24
    v_mul_f32 v25, s26, v25
    v_mul_f32 v2, s26, v2
    v_exp_f32 v25, v25
    v_exp_f32 v2, v2
    s_nop 0
    v_mul_f32 v3, v3, v2
    v_fma_f32 v3, v25, s57, v3
    v_rcp_f32 v3, v3
    s_nop 0
    v_mul_f32 v15, v25, v3
    s_cmp_lg_u32 s4, 2
    s_cbranch_scc1 L_v_loop
    s_cmp_ge_u32 s6, 28
    s_cbranch_scc1 L_v_loop
    s_branch L_gy
    L_final:""")
    stamp(5)
    A(f"""s_cmp_ge_u32 s6, 28
    s_cbranch_scc1 L_exit
    v_bfe_u32 v2, v0, 2, 4
    v_and_b32 v3, 3, v0
    v_mul_u32_u24 v2, {RECSZ}, v2
    v_lshl_add_u32 v2, v3, 4, v2
    s_mul_i32 s24, s5, {32*RECSZ}
    s_add_u32 s24, s24, {RECB+R_Z}
    s_lshl_b32 s25, s6, 6
    s_add_u32 s24, s24, s25
    s_add_u32 s25, s24, {16*RECSZ}
    L_gp:""")
    wd()
    A(f"""buffer_load_dwordx4 v[24:27], v2, s[20:23], s24 offen sc1
    buffer_load_dwordx4 v[28:31], v2, s[20:23], s25 offen sc1
    s_waitcnt vmcnt(0)
""")
    untag(24,8,1,MP)
    if NOY&16: pass
    elif MP: A("s_and_b64 exec, exec, vcc\ns_cbranch_scc1 L_gp\ns_mov_b64 exec, -1")
    else: A("s_cbranch_vccnz L_gp")
    A(f"""v_add_f32 v24, v24, v28
    v_add_f32 v25, v25, v29
    v_add_f32 v26, v26, v30
    v_add_f32 v27, v27, v31
    s_nop 0
    v_permlane32_swap_b32 v24, v25
    v_permlane32_swap_b32 v26, v27
    s_nop 0
    v_add_f32 v24, v24, v25
    v_add_f32 v26, v26, v27
    s_nop 1
    v_permlane16_swap_b32 v24, v26
    s_nop 1
    v_add_f32 v24, v24, v26
    s_nop 1
    v_add_f32_dpp v24, v24, v24 row_ror:4 row_mask:0xf bank_mask:0xf
    s_nop 1
    v_add_f32_dpp v24, v24, v24 row_ror:8 row_mask:0xf bank_mask:0xf""")
    rnd(24)
    A("v_mul_f32 v24, v24, v14")
    rnd(24)
    A("""v_and_b32 v1, 0xffff0000, v0
    v_and_b32 v2, 0x0000ffc0, v0
    v_add_f32 v24, v24, v1
    v_lshrrev_b32 v2, 5, v2
    v_cvt_pk_bf16_f32 v24, v24, v24
    buffer_store_short v24, v2, s[8:11], 0 offen
    s_cmp_lg_u32 s2, 0
    s_cbranch_scc1 L_exit
    v_mov_b32 v1, s84
    v_mov_b32 v2, 0
    s_mov_b64 exec, 1
    buffer_store_dword v1, v2, s[20:23], 0 offen sc1
    s_mov_b64 exec, -1
    L_exit:""")
    if PROF:
        stamp(6)
        A(f"""s_waitcnt lgkmcnt(0)
        s_lshl_b32 s24, s2, 8
        s_add_u32 s24, s24, {PROFBASE+32}
        s_cmp_gt_u32 s4, 2
        s_cbranch_scc1 L_end
        s_lshl_b32 s25, s4, 5
        s_add_u32 s24, s24, s25""")
        for k in range(7): A(f"v_mov_b32 v{24+k}, s{64+2*k}")
        A("""v_mov_b32 v1, 0
        s_mov_b64 exec, 1
        buffer_store_dwordx4 v[24:27], v1, s[20:23], s24 offen
        buffer_store_dwordx4 v[28:31], v1, s[20:23], s24 offen offset:16""")
    A("L_end:\ns_endpgm")
    A(f"""L_gy:
    v_and_b32 v1, 3, v0
    v_bfe_u32 v2, v0, 4, 1
    v_bfe_u32 v3, v0, 5, 1
    v_lshl_add_u32 v2, v2, 1, v3
    v_lshl_add_u32 v3, v1, 2, v2
    v_lshlrev_b32 v2, 3, v2
    v_bfe_u32 v28, s84, v2, 8
    v_lshlrev_b32 v2, 2, v3
    s_and_b32 s24, s7, 0xfc
    s_mul_i32 s24, s24, {RECSZ}
    s_and_b32 s25, s6, 3
    s_lshl_b32 s25, s25, 6
    s_add_u32 s24, s24, s25
    s_add_u32 s24, s24, {RECB+R_Y}
    s_add_u32 s25, s24, {2*RECSZ}
    L_yp:""")
    wd()
    for c in range(4): A(f"buffer_load_dword v{24+c}, v2, s[20:23], s{24+(c>>1)} offen offset:{(c&1)*RECSZ} YF")
    A("s_waitcnt vmcnt(0)")
    for c in range(4): A(f"v_xor_b32 v{24+c}, v28, v{24+c}")
    A(f"""v_or3_b32 v1, v24, v25, v26
    v_or_b32 v1, v1, v27
    v_and_b32 v1, 0xff, v1
    v_cmp_ne_u32 vcc, 0, v1
    {"" if NOY&4 else "s_cbranch_vccnz L_yp"}
    v_add_f32 v24, v24, v25
    v_add_f32 v26, v26, v27
    v_add_f32 v24, v24, v26""")
    rnd(24)
    A(f"""v_mul_f32 v1, {f2u(-1.4426950408889634)}, v24
    v_exp_f32 v1, v1
    s_nop 0
    v_add_f32 v1, 1.0, v1
    v_rcp_f32 v1, v1
    s_nop 0
    v_mul_f32 v14, v24, v1""")
    rnd(14)
    A(f"""s_lshl_b32 s24, s6, 4
    v_add_u32 v3, s24, v3
    v_and_b32 v1, 15, v0
    v_cmp_gt_u32 vcc, 4, v1
    v_mov_b32 v1, 1023
    s_nop 0
    v_cndmask_b32 v3, v1, v3, vcc
    v_lshlrev_b32 v2, 1, v3
    s_mul_i32 s24, s5, 896
    s_add_u32 s8, s32, s24
    s_addc_u32 s9, s33, 0
    s_mov_b32 s10, 896
    s_mov_b32 s11, 0x20000
    buffer_load_ushort v1, v2, s[8:11], 0 offen nt
    s_add_u32 s8, s50, s24
    s_addc_u32 s9, s51, 0
    v_lshl_add_u32 v0, v3, 6, v0
    s_waitcnt vmcnt(0)
    v_lshl_add_u32 v0, v1, 16, v0
    s_branch L_v_loop""")
    L.append(f""".section .rodata,"a"
.p2align 6
.amdhsa_kernel {name}
  .amdhsa_next_free_vgpr 168
  .amdhsa_next_free_sgpr 96
  .amdhsa_accum_offset 168
  .amdhsa_group_segment_fixed_size 0
  .amdhsa_kernarg_size 96
  .amdhsa_user_sgpr_count 2
  .amdhsa_user_sgpr_kernarg_segment_ptr 1
  .amdhsa_system_sgpr_workgroup_id_x 1
.end_amdhsa_kernel""")
    return "\n".join(L)+"\n"
if __name__=="__main__":
    kw=eval("dict(%s)"%(sys.argv[1] if len(sys.argv)>1 else ""))
    sys.stdout.write(gen(**kw))
```

```python
import sys, struct
NAME="recurrent_scan__mha_block_cached__geglu_ffn__decode_kernel"
def f2u(x): return struct.unpack("<I",struct.pack("<f",x))[0]

def gen(D=20, PROF=0, XF="", WF="", SLEEP=0, WD=0, NOFF=0, NOWO=0, TR=4, D2=48, T2=112, ROT=1, ROTS=14, SFL="sc1", LFL="sc1", YF="sc1 nt", TOUCH=0, SCHED=None, NOQ=0, QW=10, WO0=72, E0=2, NOY=0, QL=1, MP=1, WDT=3, YS="sc1", YL="sc1", DX=22, TXG=(0,0,0,22,0,0,8,10), OF='', WM=0, WMW=4, TXX=(0,)*8, WQD=0, BAR=0, WOS=0, ST=0, PF=31, PFW=0, PFE=24, PFF='', HWV=2, SP=1, TXR=0, SK=1, CT=None, CB=1, PW=0, CW=5, CV=8, CLO=-2, name=NAME):
    L=[]
    def A(s):
        for ln in s.split("\n"):
            ln=ln.strip()
            if ln.endswith(" sc1"): ln=ln[:-3]+(SFL if "store" in ln else LFL)
            if ln.endswith(" YF"): ln=ln[:-2]+(((YS or YF) if "store" in ln else (YL or YF)))
            if ln: L.append(("" if ln.endswith(":") else "    ")+ln)
    NS=8; SLOT=16384
    PBUF=NS*SLOT; RED=PBUF+4096; FL=RED+16384
    O_READY=0; O_DONE=256; O_QF=288; O_WFLAG=320; O_WMAX=384; O_WSUM=448; O_CTL=480; O_H=512; PX=1024
    XN=FL+1024; XS=960
    LDS=XN+8*XS
    QX=4096; RECB=262144
    RECSZ=2304; R_Z=0; R_ML=1792; R_Y=2048; HX=RECB-65536
    TG=80
    PROFBASE=4<<20
    W=40
    def w(i,n=4): return f"v[{W+i}:{W+i+n-1}]"
    def v(i,n): return f"v[{i}:{i+n-1}]"
    C1=f2u(1.4426950408889634/16.0)
    hdr=open("recurrent_scan__mha_block_cached__geglu_ffn__decode.s.ref").read().split("; Override")[0]
    L.append(hdr.rstrip())
    L.append(f"; @launch grid=(256,1,1) block=(576,1,1) lds={LDS}")
    L.append('.amdgcn_target "amdgcn-amd-amdhsa--gfx950"\n.text')
    L.append(f".globl {name}\n.p2align 8\n.type {name},@function\n{name}:")
    def stamp(k):
        if PROF: A(f"s_memrealtime s[{64+2*k}:{65+2*k}]")
    def srd(d,ptr,size):
        A(f"s_mov_b32 s{d}, s{ptr}\ns_mov_b32 s{d+1}, s{ptr+1}\ns_mov_b32 s{d+2}, {size}\ns_mov_b32 s{d+3}, 0x20000")
    lab=[0]
    def newlab(p):
        lab[0]+=1; return f"L_{p}{lab[0]}"
    def wd():
        if WD: A("s_sub_u32 s61, s61, 1\ns_cbranch_scc1 L_end")
    def setflag(off,val):
        A(f"v_mov_b32 v1, {val}\ns_mov_b64 exec, 1\nds_write_b32 v9, v1 offset:{off}\ns_mov_b64 exec, -1")
    def waitflag(off,val,sleep=0):
        a=newlab("w"); b=newlab("wd")
        A(f"""{a}:
        ds_read_b32 v1, v8 offset:{off}
        s_waitcnt lgkmcnt(0)
        v_cmp_gt_i32 vcc, {val}, v1
        s_cbranch_vccz {b}""")
        if sleep: A(f"s_sleep {sleep}")
        wd()
        A(f"s_branch {a}\n{b}:")
    def allred(op,x,t,rows=True,cross=True):
        for m in ("quad_perm:[1,0,3,2]","quad_perm:[2,3,0,1]","row_half_mirror")+(("row_mirror",) if rows else ()):
            A(f"s_nop 1\n{op}_dpp v{x}, v{x}, v{x} {m} row_mask:0xf bank_mask:0xf")
        if cross:
            for p in ("v_permlane16_swap_b32","v_permlane32_swap_b32"):
                A(f"v_mov_b32 v{t}, v{x}\ns_nop 1\n{p} v{x}, v{t}\ns_nop 1\n{op} v{x}, v{x}, v{t}")
    def tag(x):
        for r in range(4): A(f"v_mov_b32_sdwa v{x+r}, s{TG+r} dst_sel:BYTE_0 dst_unused:UNUSED_PRESERVE src0_sel:BYTE_0")
        A("s_nop 0")
    def untag(x,n,t,quad=False):
        for r in range(n): A(f"v_xor_b32 v{x+r}, s{TG+(r&3)}, v{x+r}")
        A(f"v_or3_b32 v{t}, v{x}, v{x+1}, v{x+2}")
        for r in range(3,n-1,2): A(f"v_or3_b32 v{t}, v{t}, v{x+r}, v{x+r+1}")
        A(f"v_or_b32 v{t}, v{t}, v{x+n-1}")
        if quad:
            for m in ("[1,0,3,2]","[2,3,0,1]"): A(f"s_nop 1\nv_or_b32_dpp v{t}, v{t}, v{t} quad_perm:{m} row_mask:0xf bank_mask:0xf")
        A(f"v_and_b32 v{t}, 0xff, v{t}\nv_cmp_ne_u32 vcc, 0, v{t}")
    def ltag(x,sh):
        A(f"v_bfe_u32 v{x}, v0, {sh}, 2\nv_lshlrev_b32 v{x}, 3, v{x}\nv_bfe_u32 v{x}, s84, v{x}, 8")
    def rnd(x,t=None):
        A(f"v_cvt_pk_bf16_f32 v{x}, v{x}, v{x}\nv_and_b32 v{x}, 0xffff0000, v{x}")

    A(f"""s_cmp_ge_u32 s2, 256
    s_cbranch_scc1 L_end
    s_load_dwordx4 s[36:39], s[0:1], 8
    s_load_dwordx2 s[32:33], s[0:1], 0
    s_load_dwordx4 s[40:43], s[0:1], 24
    s_load_dwordx8 s[44:51], s[0:1], 48
    s_load_dwordx4 s[52:55], s[0:1], 80""")
    stamp(0)
    if WD: A(f"s_mov_b32 s61, {WD}")
    A(f"""v_lshrrev_b32 v1, 6, v0
    v_and_b32 v0, 63, v0
    v_readfirstlane_b32 s3, v1
    s_and_b32 s6, s2, 7
    s_lshl_b32 s6, s6, 2
    s_lshr_b32 s7, s2, 6
    s_add_u32 s6, s6, s7
    s_bfe_u32 s5, s2, 0x30003
    s_lshl_b32 s7, s5, 5
    s_add_u32 s7, s7, s6
    s_cmp_lg_u32 s3, 0
    s_cbranch_scc1 L_worker""")
    A("s_setprio 3")
    A(f"""v_lshlrev_b32 v8, 2, v0
    v_add_u32 v8, {FL}, v8
    v_mov_b32 v1, 0
    ds_write_b32 v8, v1 offset:0
    ds_write_b32 v8, v1 offset:256
    v_and_b32 v9, 7, v0
    v_lshlrev_b32 v9, 2, v9
    v_add_u32 v9, {FL}, v9""")
    A("""v_lshrrev_b32 v1, 5, v0
    v_lshlrev_b32 v2, 4, v0
    v_lshlrev_b32 v1, 5, v1
    v_xor_b32 v4, v2, v1
    v_xor_b32 v5, 64, v4
    v_xor_b32 v6, 0x80, v4
    v_xor_b32 v7, 0xc0, v4
    s_lshl_b32 s24, s7, 20
    s_waitcnt lgkmcnt(0)
    s_add_u32 s8, s36, s24
    s_addc_u32 s9, s37, 0
    s_mov_b32 s10, 0x100000
    s_mov_b32 s11, 0x20000
    s_add_u32 s12, s38, s24
    s_addc_u32 s13, s39, 0""")
    if SCHED is None: SCHED=[(D,T2),(D2,128)] if D2 else [(D,128)]
    sfl=[SCHED[0][2] if len(SCHED[0])>2 else "nt"]
    vb=[4]
    def ld(i): A(f"buffer_load_dwordx4 v{vb[0]+i}, s[8:11], s26 offen offset:{i*1024} {sfl[0]} lds")
    for q in range(4):
        if q==0: A(f"s_mul_i32 s26, s2, {ROT}\ns_lshl_b32 s26, s26, {ROTS}\ns_mov_b32 m0, 0\ns_and_b32 s26, s26, 0xfffff")
        else: A(f"s_add_u32 s26, s26, 4096\ns_mov_b32 m0, {q*4096}\ns_and_b32 s26, s26, 0xfffff")
        for i in range(4): ld(i)
        if q==BAR: A("s_barrier")
    A(f"""s_mov_b32 s25, 1
    s_mov_b32 s27, {SLOT}
    s_mov_b32 s29, 0
    v_mov_b32 v10, 0""")
    if PROF: A("s_mov_b32 s30, 0")
    if PROF: A("s_memrealtime s[70:71]\nv_mov_b32 v20, 0")
    def ldloop(nm,Dd,tend,ctl=False):
        lagi=(Dd+15)%16; lags=(Dd+15)//16
        A(f"""L_ld_loop{nm}:
        s_sub_u32 s28, s25, {NS-1}
        s_waitcnt lgkmcnt(0)""")
        if PROF: A("s_lshr_b32 m0, s25, 1\nv_writelane_b32 v20, s70, m0")
        A(f"""v_cmp_gt_i32 vcc, s28, v10
        s_cbranch_vccz L_ld_go{nm}
        L_ld_spin{nm}:""")
        if PROF: A("s_add_u32 s30, s30, 1")
        wd()
        A(f"""ds_read_b32 v10, v9 offset:{O_DONE}
        s_waitcnt lgkmcnt(0)
        v_cmp_gt_i32 vcc, s28, v10
        s_cbranch_vccnz L_ld_spin{nm}
        L_ld_go{nm}:""")
        for q in range(4):
            A(f"s_add_u32 s26, s26, 4096\ns_add_u32 m0, s27, {q*4096}\ns_and_b32 s26, s26, 0xfffff")
            for i in range(4):
                A(f"s_waitcnt vmcnt({Dd-1})")
                ld(i)
                if q*4+i==lagi:
                    A(f"s_sub_u32 s28, s25, {lags-1}\ns_max_i32 s29, s29, s28\nv_mov_b32 v2, s29\nds_write_b32 v8, v2 offset:{O_READY}")
                if q*4+i==14:
                    A(f"ds_read_b32 v10, v9 offset:{O_DONE}")
                    if ctl: A(f"ds_read_b32 v11, v9 offset:{O_CTL}")
                    if PROF: A("s_memrealtime s[70:71]")
        A(f"""s_add_u32 s25, s25, 1
        s_add_u32 s27, s27, {SLOT}
        s_and_b32 s27, s27, {NS*SLOT-1}
        s_cmp_eq_u32 s25, 64
        s_cselect_b32 s8, s12, s8
        s_cselect_b32 s9, s13, s9
        s_cmp_lt_u32 s25, {tend}
        s_cbranch_scc1 {"L_disp" if ctl else "L_ld_loop"+nm}""")
        if ctl: A("s_branch L_ld_loopb")
        return lags
    if DX:
        pk=lambda t: sum(x<<(8*i) for i,x in enumerate(t))
        A(f"""s_mov_b32 s14, {pk(TXG[:4])}
        s_mov_b32 s15, {pk(TXG[4:])}
        s_lshr_b32 s24, s2, 5
        s_lshl_b32 s24, s24, 3
        s_lshr_b64 s[14:15], s[14:15], s24
        s_mov_b32 s16, {pk(TXX[:4])}
        s_mov_b32 s17, {pk(TXX[4:])}
        s_and_b32 s24, s2, 7
        s_lshl_b32 s24, s24, 3
        s_lshr_b64 s[16:17], s[16:17], s24
        s_add_u32 s24, s14, s16
        s_and_b32 s24, s24, 0xff
        s_cbranch_scc0 L_ld_loopa
        s_add_u32 s24, s24, 1""")
        ldloop("x",DX,"s24")
    if CT:
        A("v_mov_b32 v11, 0\nL_disp:\ns_waitcnt lgkmcnt(0)\nv_readfirstlane_b32 s24, v11")
        for k in range(len(CT)-1): A(f"s_cmp_eq_i32 s24, {k+CLO}\ns_cbranch_scc1 L_ld_loopc{k}")
        for k in range(len(CT)-1,-1,-1): ldloop(f"c{k}",CT[k],SCHED[0][1],True)
    for k,sc in enumerate(SCHED):
        if CT and k==0: continue
        Dl,te=sc[:2]; sfl[0]=sc[2] if len(sc)>2 else "nt"
        lags=ldloop("abcdefgh"[k],Dl,min(te,128-2*SP))
    if SP:
        A("v_and_b32 v1, 16, v0\nv_cmp_eq_u32 vcc, 0, v1\ns_add_u32 s26, s26, 4096")
        for pr in range(SP):
            A("""s_and_b32 s26, s26, 0xfffff
            s_add_u32 s24, s26, 16384
            s_and_b32 s24, s24, 0xfffff
            s_sub_u32 s24, s24, 256
            v_mov_b32 v1, s24
            v_mov_b32 v3, s26
            s_add_u32 s26, s26, 32768
            v_cndmask_b32 v1, v1, v3, vcc""")
            for i in range(4): A(f"v_add_u32 v{24+4*pr+i}, v1, v{4+i}")
        for k in range(2*SP):
            vb[0]=24+4*(k%SP)
            A(f"s_mov_b32 s26, {0xff000+256*(k//SP)}")
            ldloop(f"z{k}",Dl,0)
    for u in range(128-lags,128):
        A(f"v_mov_b32 v2, {u+1}\ns_waitcnt vmcnt({min(Dl-1,16*(127-u))})\nds_write_b32 v8, v2 offset:{O_READY}")
    if PROF:
        stamp(1)
        srd(20,54,0x40000000)
        A(f"""s_waitcnt lgkmcnt(0)
        s_lshl_b32 s24, s2, 8
        s_add_u32 s24, s24, {PROFBASE}
        v_mov_b32 v4, s64
        v_mov_b32 v5, s66
        v_mov_b32 v6, s30
        s_getreg_b32 s31, hwreg(HW_REG_XCC_ID)
        v_mov_b32 v7, s31
        v_mov_b32 v1, 0
        v_lshlrev_b32 v2, 2, v0
        s_add_u32 s25, s24, 65536
        buffer_store_dword v20, v2, s[20:23], s25 offen
        s_mov_b64 exec, 1
        buffer_store_dwordx4 v[4:7], v1, s[20:23], s24 offen""")
    A("s_waitcnt lgkmcnt(0)\ns_endpgm")
    def pace_pub(sr):
        l=newlab("pp")
        A(f"""s_cmp_lg_u32 s93, 0
        s_cbranch_scc1 {l}
        s_and_b32 s85, s84, 0xffffff00
        s_or_b32 s85, s85, {sr}
        v_mov_b32 v14, s85
        v_mov_b32 v15, {PX}
        s_mov_b64 exec, 1
        buffer_store_dword v14, v15, s[20:23], 0 offen sc1
        s_mov_b64 exec, -1
        {l}:""")
    def pace_get(sr):
        A(f"""v_mov_b32 v15, {PX}
        s_and_b32 s85, s84, 0xffffff00
        s_mov_b64 exec, 1
        buffer_load_dword v14, v15, s[20:23], 0 offen sc1
        s_sub_u32 s86, {sr}, {CB}
        s_waitcnt vmcnt(0)
        v_mov_b32 v15, {FL+O_CTL}
        v_xor_b32 v14, s85, v14
        v_cmp_lt_u32 vcc, 0xff, v14
        v_subrev_u32 v14, s86, v14
        v_med3_i32 v14, v14, {CLO}, {CLO+len(CT)-1}
        v_cndmask_b32 v14, v14, 0, vcc
        ds_write_b32 v15, v14
        s_mov_b64 exec, -1""")
    def sweep(mask,early):
        n1,n2=(7168,8192) if SK else (6272,7168)
        A(f"""s_and_b32 s24, s2, 7
        s_mul_i32 s24, s24, {28 if SK else 32}
        s_lshr_b32 s25, s2, 3
        s_add_u32 s24, s24, s25""")
        if SK: A("s_lshr_b32 s25, s2, 7\ns_lshl_b32 s25, s25, 2\ns_sub_u32 s24, s24, s25")
        A(f"""s_mul_i32 s25, s24, {n1}
        s_mul_i32 s24, s24, {2*n2}
        s_cmp_ge_u32 s4, 5
        s_cselect_b32 s88, s40, s42
        s_cselect_b32 s89, s41, s43
        s_mov_b32 s90, {n2}
        s_mov_b32 s91, 0x20000
        s_bitcmp1_b32 s4, 0
        s_cselect_b32 s85, {n2}, 0
        s_add_u32 s24, s24, s85""")
        for c,pt in ((0,44),(1,46),(2,48)):
            A(f"""s_cmp_eq_u32 s4, {c}
            s_cselect_b32 s88, s{pt}, s88
            s_cselect_b32 s89, s{pt+1}, s89
            s_cselect_b32 s90, {n1}, s90
            s_cselect_b32 s24, s25, s24""")
        A(f"""s_add_u32 s88, s88, s24
        s_addc_u32 s89, s89, 0
        v_lshlrev_b32 v2, 4, v0
        v_add_u32 v38, 4096, v2
        s_lshr_b32 s24, {mask}, s4""")
        if SK: A("s_lshr_b32 s25, s2, 5\ns_cmp_eq_u32 s25, 3\ns_cselect_b32 s24, 0, s24")
        A("s_bitcmp1_b32 s24, 0")
        if early: A("s_cselect_b32 s90, s90, 0")
        else: A("s_cbranch_scc0 L_nopf")
        if PFW and not early: waitflag(O_READY,PFW,SLEEP)
        for i in range(7+SK): A(f"buffer_load_dwordx4 {w(96)}, v{38 if i>3 else 2}, s[88:91], 0 offen offset:{(i&3)*1024} {PFF}")
        if not early: A("L_nopf:")
    A(f"""L_worker:
    s_sub_u32 s4, s3, 1
    v_lshlrev_b32 v12, 4, v0
    s_mul_i32 s24, s4, 896
    s_mov_b32 s10, 896
    s_mov_b32 s11, 0x20000
    s_waitcnt lgkmcnt(0)
    s_add_u32 s8, s32, s24
    s_addc_u32 s9, s33, 0
    s_load_dword s84, s[54:55], 0
    buffer_load_dwordx4 v[16:19], v12, s[8:11], 0 offen {XF}
    s_barrier""")
    srd(12,40,448*4096*2)
    A("s_mov_b32 s27, 0\ns_mov_b32 s26, 0\nv_mov_b32 v21, 0\ns_cmp_lg_u32 s4, 7\ns_cbranch_scc1 L_nowq")
    A(f"""v_lshrrev_b32 v2, 1, v0
    v_and_b32 v3, 1, v0
    v_lshlrev_b32 v2, 13, v2
    v_lshl_add_u32 v21, v3, 4, v2
    s_and_b32 s26, s2, 7
    s_lshl_b32 s26, s26, 10
    s_lshr_b32 s27, s2, 3
    s_xor_b32 s27, s27, {TXR}
    s_lshl_b32 s27, s27, 5
    s_mov_b32 m0, {RED}
    s_add_u32 s26, s26, s27""")
    def wqld(i0,i1):
        for i in range(i0,i1):
            if not NOQ&1: A(f"buffer_load_dwordx4 v21, s[12:15], s26 offen {WF} lds")
            if i<13: A(f"s_mov_b32 m0, {RED+(i+1)*1024}\ns_add_u32 s26, s26, {32*8192}")
    wqld(0,14-WQD)
    if TOUCH:
        A("s_branch L_notouch\nL_nowq:")
        A(f"""s_lshl_b32 s24, s7, 20
        s_mov_b32 s25, 0x80000
        s_mov_b32 s12, s38
        s_mov_b32 s13, s39
        s_mov_b32 s14, 0x10000000""")
        def sel(c,ptr,size,o0,o1):
            A(f"""s_cmp_eq_u32 s4, {c}
            s_cselect_b32 s12, s{ptr}, s12
            s_cselect_b32 s13, s{ptr+1}, s13
            s_cselect_b32 s14, {size}, s14
            s_cselect_b32 s24, {o0}, s24
            s_cselect_b32 s25, {o1}, s25""")
        A(f"s_mul_i32 s26, s6, 112\ns_mul_i32 s27, s6, {56*896}\ns_lshr_b32 s28, s6, 1\ns_mul_i32 s28, s28, {256*896}\ns_mul_i32 s29, s5, 896")
        sel(1,44,448*1792*2,"s26",447*3584)
        sel(2,46,448*1792*2,"s26",447*3584)
        sel(3,48,448*1792*2,"s27",55*896)
        sel(4,42,448*4096*2,"s28",255*896)
        sel(5,50,8*896,"s29",512)
        sel(6,54,0x40000000,RECB-4096,256*RECSZ+8192)
        A(f"""v_mul_lo_u32 v2, v0, s25
        s_mov_b64 exec, 3
        buffer_load_dword v{W+119}, v2, s[12:15], s24 offen nt
        s_mov_b64 exec, -1
        L_notouch:""")
    elif PFE:
        A("s_branch L_nosw\nL_nowq:"); sweep(PFE,True); A("L_nosw:")
    else: A("L_nowq:")
    A(f"""s_mul_i32 s24, s7, {RECSZ}
    s_add_u32 s24, s24, {RECB}
    s_add_u32 s16, s54, s24
    s_addc_u32 s17, s55, 0
    s_mov_b32 s18, {RECSZ}
    s_mov_b32 s19, 0x20000""")
    srd(20,54,0x40000000)
    A(f"""v_and_b32 v3, 15, v0
    v_and_b32 v1, 1, v3
    v_cmp_eq_u32 vcc, 1, v1
    v_mov_b32 v14, 0xffff
    v_mov_b32 v15, 0xffff0000
    v_cndmask_b32 v14, v14, v15, vcc
    v_lshrrev_b32 v1, 1, v3""")
    for r in range(4):
        A(f"v_cmp_eq_u32 vcc, {r}, v1\ns_nop 1\nv_cndmask_b32 v{4+r}, 0, v14, vcc")
    A(f"""v_and_b32 v8, 7, v0
    v_lshlrev_b32 v8, 2, v8
    v_add_u32 v8, {FL}, v8
    s_lshl_b32 s25, s4, 2
    s_add_u32 s25, s25, {FL}
    v_mov_b32 v9, s25
    v_add_u32 v10, {RED}, v12
    s_lshl_b32 s25, s4, 10
    v_add_u32 v11, s25, v10
    s_mul_i32 s25, s4, {XS}
    s_add_u32 s25, s25, {XN}
    v_add_u32 v12, s25, v12""")
    setflag(O_DONE,"s4")
    KA=W+124
    A(f"""v_lshrrev_b32 v2, 4, v0
    v_and_b32 v3, 7, v0
    v_lshlrev_b32 v13, 4, v2
    v_add_u32 v13, {PBUF}, v13
    v_lshlrev_b32 v3, 1, v3
    v_xor_b32 v3, v3, v2
    v_lshlrev_b32 v3, 4, v3
    v_and_b32 v2, 15, v0
    v_lshl_add_u32 v3, v2, 9, v3
    s_lshl_b32 s25, s4, 14
    v_add_u32 v{KA}, s25, v3
    v_xor_b32 v{KA+1}, 64, v{KA}
    v_xor_b32 v{KA+2}, 0x80, v{KA}
    v_xor_b32 v{KA+3}, 0xc0, v{KA}""")
    A("""s_cmp_lg_u32 s4, 7
    s_cbranch_scc1 L_xw0
    s_waitcnt vmcnt(""" + ("0" if NOQ&1 else str(14-WQD)) + """)""")
    wqld(14-WQD,14)
    A("""s_branch L_xw1
    L_xw0:
    s_waitcnt vmcnt(""" + str(1 if TOUCH else 7+SK if PFE else 0) + """)
    L_xw1:""")
    for k in range(4):
        A(f"v_lshlrev_b32 v{32+2*k}, 16, v{16+k}\nv_and_b32 v{33+2*k}, 0xffff0000, v{16+k}")
    A("v_add_f32 v1, v32, v33")
    for k in range(2,8): A(f"v_add_f32 v1, v1, v{32+k}")
    allred("v_add_f32",1,2)
    A(f"v_mul_f32 v1, {f2u(1.0/448)}, v1\nv_mov_b32 v3, 0")
    for k in range(8): A(f"v_sub_f32 v2, v{32+k}, v1\nv_fmac_f32 v3, v2, v2")
    A("v_cmp_gt_u32 vcc, 56, v0\ns_nop 1\nv_cndmask_b32 v3, 0, v3, vcc")
    allred("v_add_f32",3,2)
    A(f"v_mul_f32 v3, {f2u(1.0/448)}, v3")
    rnd(1); rnd(3)
    A(f"v_add_f32 v3, {f2u(1e-5)}, v3"); rnd(3)
    A("v_sqrt_f32 v3, v3\ns_nop 0"); rnd(3)
    A("v_rcp_f32 v2, v3\ns_nop 0")
    A("v_fma_f32 v14, -v3, v2, 1.0\nv_fmac_f32 v2, v14, v2")
    for k in range(8): A(f"v_sub_f32 v{32+k}, v{32+k}, v1")
    for k in range(8): rnd(32+k)
    for k in range(8): A(f"v_mul_f32 v{24+k}, v{32+k}, v2")
    for k in range(8): A(f"v_fma_f32 v{32+k}, -v{24+k}, v3, v{32+k}")
    for k in range(8): A(f"v_fmac_f32 v{24+k}, v{32+k}, v2")
    for k in range(4): A(f"v_cvt_pk_bf16_f32 v{16+k}, v{24+2*k}, v{25+2*k}")
    A(f"""s_mov_b32 exec_hi, 0x00ffffff
    ds_write_b128 v12, v[16:19]
    s_mov_b32 exec_hi, -1
    s_waitcnt lgkmcnt(0)
    s_add_u32 s84, s84, 0x01010101
    s_and_b32 s{TG}, s84, 0xff
    s_bfe_u32 s{TG+1}, s84, 0x80008
    s_bfe_u32 s{TG+2}, s84, 0x80010
    s_lshr_b32 s{TG+3}, s84, 24""")
    setflag(O_WFLAG,1)
    if ST:
        A(f"""s_lshr_b32 s24, s2, 3
        s_lshl_b32 s24, s24, 3
        s_add_u32 s24, s24, s4
        s_add_u32 s25, s24, 256
        s_min_u32 s25, s25, 391
        s_lshl_b32 s25, s25, 12
        s_min_u32 s85, s24, 111
        s_lshl_b32 s24, s24, 12
        s_and_b32 s86, s2, 7
        s_mul_i32 s86, s86, 112
        s_add_u32 s85, s85, s86
        s_lshl_b32 s85, s85, 12
        s_load_dword s86, s[44:45], s24
        s_load_dword s87, s[44:45], s25
        s_load_dword s88, s[46:47], s24
        s_load_dword s89, s[46:47], s25
        s_load_dword s90, s[48:49], s24
        s_load_dword s91, s[48:49], s25
        s_load_dword s92, s[42:43], s85""")
    A("s_cmp_lg_u32 s4, 7\ns_cbranch_scc1 L_noq")
    A(f"""v_lshrrev_b32 v2, 4, v0
    v_and_b32 v3, 15, v0
    v_lshlrev_b32 v14, 8, v2
    v_lshl_add_u32 v14, v3, 3, v14
    v_add_u32 v14, {RED}, v14
    v_and_b32 v1, 7, v0
    v_mul_u32_u24 v15, {XS}, v1
    v_lshl_add_u32 v15, v2, 4, v15
    v_add_u32 v15, {XN}, v15
    v_lshlrev_b32 v3, {6 if QL else 14}, v3
    v_lshl_add_u32 v2, v2, 4, v3
    s_and_b32 s24, s2, 7
    s_lshl_b32 s24, s24, {14 if QL else 11}
    s_lshr_b32 s25, s2, 3
    s_xor_b32 s25, s25, {TXR}
    s_lshl_b32 s25, s25, {9 if QL else 6}
    s_add_u32 s24, s24, s25
    s_add_u32 s24, s24, {QX}""")
    if QL: A(f"""s_lshr_b32 s25, s6, 1
    s_lshl_b32 s25, s25, 13
    s_lshl_b32 s26, s5, 6
    s_add_u32 s25, s25, s26
    s_add_u32 s25, s25, {QX}
    v_lshrrev_b32 v1, 2, v0
    v_and_b32 v3, 3, v0
    v_lshlrev_b32 v3, 4, v3
    v_lshl_add_u32 v3, v1, 9, v3""")
    else: A(f"""s_lshr_b32 s25, s7, 1
    s_lshl_b32 s25, s25, 10
    s_add_u32 s25, s25, {QX}
    v_lshlrev_b32 v3, 4, v0""")
    waitflag(O_WFLAG,1)
    for st in range(14): A(f"ds_read_b128 {w(st*4)}, v15 offset:{st*64}")
    A("s_waitcnt vmcnt(0) lgkmcnt(0)")
    def trr(st):
        A(f"ds_read_b64_tr_b16 {w(56+st*4,2)}, v14 offset:{st*1024}\nds_read_b64_tr_b16 {w(58+st*4,2)}, v14 offset:{st*1024+128}")
    for st in range(7): trr(st)
    for st in range(14):
        A(f"s_waitcnt lgkmcnt({min(12,2*(13-st))})")
        c="0" if st<2 else v(16+4*(st&1),4)
        A(f"v_mfma_f32_16x16x32_bf16 {v(16+4*(st&1),4)}, {w(56+st*4)}, {w(st*4)}, {c}")
        if st+7<14: trr(st+7)
    A("s_nop 7")
    for r in range(4): A(f"v_add_f32 v{16+r}, v{16+r}, v{20+r}")
    for r in range(4): rnd(16+r)
    for r in range(4): A(f"v_or_b32 v{16+r}, s{TG+r}, v{16+r}")
    A(f"""s_mov_b32 exec_lo, 0x00ff00ff
    s_mov_b32 exec_hi, 0x00ff00ff
    {"" if NOQ&2 else "buffer_store_dwordx4 v[16:19], v2, s[20:23], s24 offen sc1"}
    s_mov_b64 exec, -1
    v_lshlrev_b32 v14, 3, v0
    v_add_u32 v14, {PBUF}, v14
    s_mov_b32 s26, 0x07060302
    s_mov_b32 s27, s25
    L_noq:""")
    SF=W+120
    A(f"""s_mov_b32 s28, 0
    s_add_u32 s29, s4, 1
    s_mov_b32 s30, 0x01010101
    s_mov_b32 s31, 0x01010101""")
    waitflag(O_READY,"s29",SLEEP)
    for half in range(2):
        for jj in range(4):
            for ab in range(2):
                A(f"ds_read_b128 {w(32+half*32+(jj*2+ab)*4)}, v{KA+jj} offset:{half*256+ab*8192}")
        if half==0: A("s_waitcnt lgkmcnt(4)")
    A("s_add_u32 s25, s4, 8")
    setflag(O_DONE,"s25")
    if PF&~PFE: sweep(PF&~PFE,False)
    if WM: L.append(";WENTRY")
    A("s_cmp_lg_u32 s4, 7\ns_cbranch_scc1 L_noq2")
    if QW: waitflag(O_READY,QW,SLEEP)
    A("L_qp:")
    wd()
    if not NOQ&4: A("buffer_load_dwordx4 v[20:23], v3, s[20:23], s27 offen sc1\ns_waitcnt vmcnt(0)")
    untag(20,4,1)
    if NOQ:
        for r in range(4): A(f"v_mov_b32 v{20+r}, 0")
    A(f"""{"" if NOQ&6 else "s_cbranch_vccnz L_qp"}
    v_perm_b32 v20, v21, v20, s26
    v_perm_b32 v21, v23, v22, s26
    v_mov_b32 v1, 1
    ds_write_b64 v14, v[20:21]
    ds_write_b32 v8, v1 offset:{O_QF}
    L_noq2:""")
    waitflag(O_QF,1,SLEEP)
    stamp(1)
    for jj in range(8): A(f"ds_read_b128 {w(4*jj)}, v13 offset:{64*jj}")
    A("s_waitcnt lgkmcnt(0)")
    for half in range(2):
        for jj in range(4):
            for ab in range(2):
                c="0" if (half==0 and jj==0) else v(16+4*ab,4)
                A(f"v_mfma_f32_16x16x32_bf16 {v(16+4*ab,4)}, {w(32+half*32+(jj*2+ab)*4)}, {w((half*4+jj)*4)}, {c}")
    if CT: A(f"s_xor_b32 s93, s2, {PW}")
    A("s_branch L_k_tail\nL_k_loop:")
    waitflag(O_READY,"s29",SLEEP)
    if CT: pace_pub("s29")
    for half in range(2):
        for jj in range(4):
            for ab in range(2):
                A(f"ds_read_b128 {w(32+(jj*2+ab)*4)}, v{KA+jj} offset:{half*256+ab*8192}")
        for jj in range(4):
            for ab in range(2):
                A(f"s_waitcnt lgkmcnt({7-jj*2-ab})")
                c="0" if (half==0 and jj==0) else v(16+4*ab,4)
                A(f"v_mfma_f32_16x16x32_bf16 {v(16+4*ab,4)}, {w(32+(jj*2+ab)*4)}, {w((half*4+jj)*4)}, {c}")
    A("L_k_tail:")
    A(f"""s_add_u32 s29, s29, 8
    s_sub_u32 s25, s29, 1
    s_min_u32 s25, s25, 64""")
    setflag(O_DONE,"s25")
    A("s_nop 3\ns_mov_b64 exec, s[30:31]")
    for k in range(4): A(f"v_cvt_pk_bf16_f32 v{SF+k}, v{16+2*k}, v{17+2*k}")
    A(f"""s_mov_b64 exec, -1
    s_lshl_b64 s[30:31], s[30:31], 1
    s_add_u32 s28, s28, 1
""")
    if CT:
        A(f"s_cmp_lg_u32 s4, {CW}\ns_cbranch_scc1 L_k_nopg\ns_cmp_lt_u32 s28, 2\ns_cbranch_scc1 L_k_nopg\ns_cmp_eq_u32 s93, 0\ns_cbranch_scc1 L_k_nopg\ns_sub_u32 s87, s29, 8")
        pace_get("s87"); A("L_k_nopg:")
    A("s_cmp_ge_u32 s6, 28\ns_cbranch_scc1 L_k_noev")
    for e in range(1,5): A(f"s_cmp_eq_u32 s28, {e+E0-1}\ns_cbranch_scc1 L_ev1_{e}")
    A(f"""s_cmp_eq_u32 s28, {E0+4}
    s_cbranch_scc1 L_ev2
    s_cmp_eq_u32 s28, {E0+5}
    s_cbranch_scc1 L_ev3
    L_k_noev:
    s_cmp_lt_u32 s28, 8
    s_cbranch_scc1 L_k_loop
    s_branch L_mid""")
    A("L_ev1_1:")
    srd(12,44,448*1792*2)
    A(f"""v_lshrrev_b32 v2, 4, v0
    v_and_b32 v3, 7, v0
    v_mul_u32_u24 v2, {14*3584}, v2
    v_lshl_add_u32 v2, v3, 4, v2
    s_mul_i32 s24, s4, {56*3584}
    s_lshl_b32 s25, s6, 7
    s_add_u32 s24, s24, s25
    s_mov_b32 s27, s24""")
    for e in range(4):
        if e and TR: A(f"L_ev1_{e+1}:")
        if e==2: A("s_mov_b32 s12, s46\ns_mov_b32 s13, s47")
        m="0x00ff00ff" if e<2 else "0xff00ff00"
        sr=27 if e<2 else 24
        A(f"s_mov_b32 exec_lo, {m}\ns_mov_b32 exec_hi, {m}")
        for i in range(7*(e&1),7*(e&1)+7):
            if not NOFF: A(f"buffer_load_dwordx4 {w(64+4*i)}, v2, s[12:15], s{sr} offen {WF}\ns_add_u32 s{sr}, s{sr}, 3584")
        if TR or e==3: A("s_mov_b64 exec, -1\ns_branch L_k_loop")
    A(f"""L_ev2:
    v_lshrrev_b32 v2, 4, v0
    s_mul_i32 s24, s5, {XS}
    s_mul_i32 s25, s4, 112
    s_add_u32 s24, s24, s25
    s_add_u32 s24, s24, {XN}
    v_mul_u32_u24 v2, 28, v2
    v_add_u32 v2, s24, v2""")
    for k in range(7): A(f"ds_read_b32 v{24+k}, v2 offset:{4*k}")
    A("s_mov_b32 s24, 0x01000100\ns_mov_b32 s25, 0x03020302\ns_waitcnt lgkmcnt(0)")
    for k in range(6,-1,-1):
        A(f"v_perm_b32 v{25+2*k}, v{24+k}, v{24+k}, s25\nv_perm_b32 v{24+2*k}, v{24+k}, v{24+k}, s24")
    A("s_waitcnt vmcnt(0)")
    for i in range(14):
        bt=W+32+(i&1)*4
        for r in range(4): A(f"v_and_b32 v{bt+r}, v{4+r}, v{24+i}")
        c="0" if i==0 else v(16,4)
        A(f"s_nop 1\nv_mfma_f32_16x16x32_bf16 {v(16,4)}, {w(64+4*i)}, {v(bt,4)}, {c}")
    srd(12,48,1792*448*2)
    A(f"""v_lshrrev_b32 v2, 3, v0
    v_and_b32 v3, 7, v0
    v_mul_u32_u24 v2, 896, v2
    v_lshl_add_u32 v38, v3, 4, v2
    s_and_b32 s24, s6, 3
    s_lshl_b32 s24, s24, 3
    s_add_u32 s24, s24, s4
    s_mul_i32 s24, s24, {56*896}
    s_lshr_b32 s25, s6, 2
    s_lshl_b32 s25, s25, 7
    s_add_u32 s62, s24, s25
    ds_write_b128 v11, v[16:19] offset:8192""")
    setflag(O_WFLAG,2)
    def wdld(i0,i1):
        for i in range(i0,i1):
            if not NOFF: A(f"buffer_load_dwordx4 {w(64+4*i)}, v38, s[12:15], s62 offen {WF}\ns_add_u32 s62, s62, {8*896}")
    wdld(0,7-WDT)
    A("s_branch L_k_loop")
    A("L_ev3:")
    wdld(7-WDT,7)
    A("s_cmp_lg_u32 s4, 0\ns_cbranch_scc1 L_k_loop")
    waitflag(O_WFLAG,2,SLEEP)
    for c in range(8): A(f"ds_read_b128 {w(32+4*c)}, v10 offset:{8192+c*1024}")
    A("s_waitcnt lgkmcnt(0)")
    for c in range(1,8):
        for r in range(4): A(f"v_add_f32 v{W+32+r}, v{W+32+r}, v{W+32+4*c+r}")
    A(f"""v_lshrrev_b32 v2, 4, v0
    v_and_b32 v2, 1, v2
    v_and_b32 v3, 7, v0
    v_lshlrev_b32 v3, 2, v3
    v_lshl_add_u32 v3, v2, 7, v3
    v_add_u32 v3, {FL+O_H}, v3""")
    K0=f2u(-2*0.7978845608028654*1.4426950408889634); K1=f2u(0.044715)
    for r in range(4):
        x=W+32+r; u=W+36; t=W+37
        rnd(x)
        A(f"""v_mov_b32 v{u}, v{x}
        s_nop 1
        v_permlane32_swap_b32 v{x}, v{u}
        s_nop 1
        v_mul_f32 v{t}, v{x}, v{x}
        v_mul_f32 v{t}, {K1}, v{t}
        v_fma_f32 v{t}, v{t}, v{x}, v{x}
        v_mul_f32 v{t}, {K0}, v{t}
        v_exp_f32 v{t}, v{t}
        s_nop 0
        v_add_f32 v{t}, 1.0, v{t}
        v_rcp_f32 v{t}, v{t}
        s_nop 0
        v_mul_f32 v{x}, v{x}, v{t}""")
        rnd(x)
        A(f"v_mul_f32 v{x}, v{x}, v{u}"); rnd(x)
    A("s_mov_b32 exec_lo, 0x00ff00ff\ns_mov_b32 exec_hi, 0")
    for r in range(4): A(f"ds_write_b32 v3, v{W+32+r} offset:{32*r}")
    A(f"""s_mov_b64 exec, -1
    v_lshlrev_b32 v3, 2, v0
    v_add_u32 v2, {FL+O_H}, v3
    s_waitcnt lgkmcnt(0)
    ds_read_b32 v2, v2
    s_lshl_b32 s24, s7, 8
    s_add_u32 s24, s24, {HX}""")
    ltag(1,0)
    A(f"""s_waitcnt lgkmcnt(0)
    v_or_b32 v2, v2, v1
    {"" if NOY&1 else "buffer_store_dword v2, v3, s[20:23], s24 offen YF"}
    s_branch L_k_loop""")
    A("L_mid:")
    stamp(2)
    for k in range(4):
        A(f"v_lshlrev_b32 v{24+2*k}, 16, v{SF+k}\nv_and_b32 v{25+2*k}, 0xffff0000, v{SF+k}")
    A("""v_max3_f32 v3, v24, v25, v26
    v_max3_f32 v3, v3, v27, v28
    v_max3_f32 v3, v3, v29, v30
    v_max_f32 v3, v3, v31""")
    allred("v_max_f32",3,2)
    A(f"s_mov_b64 exec, 1\nds_write_b32 v9, v3 offset:{O_WMAX}\ns_mov_b64 exec, -1")
    setflag(O_WFLAG,3)
    A(f"""s_cmp_lg_u32 s4, {HWV}
    s_cbranch_scc1 L_noh
    s_cmp_ge_u32 s6, 28
    s_cbranch_scc1 L_noh
    v_lshlrev_b32 v2, 4, v0
    v_min_u32 v3, 47, v0
    v_lshlrev_b32 v3, 4, v3
    s_and_b32 s25, s6, 3
    s_mul_i32 s25, s25, 1792
    s_lshl_b32 s24, s5, 13
    s_add_u32 s24, s24, s25
    s_add_u32 s24, s24, {HX}
    L_hp:""")
    wd()
    A(f"""buffer_load_dwordx4 {w(0)}, v2, s[20:23], s24 offen YF
    buffer_load_dwordx4 {w(4)}, v3, s[20:23], s24 offen offset:1024 YF
    s_waitcnt vmcnt(0)""")
    untag(W,8,1)
    A(f"""{"" if NOY&1 else "s_cbranch_vccnz L_hp"}
    ds_write_b128 v10, {w(0)} offset:4096
    ds_write_b128 v10, {w(4)} offset:5120
    L_noh:""")
    A(f"""v_lshrrev_b32 v2, 4, v0
    v_lshlrev_b32 v13, 4, v2
    v_add_u32 v13, {PBUF}, v13
    v_and_b32 v3, 7, v0
    v_lshl_add_u32 v12, v3, 9, v13
    s_lshl_b32 s25, s4, 6
    v_add_u32 v12, s25, v12""")
    waitflag(O_WFLAG,3)
    A(f"ds_read_b32 v3, v8 offset:{O_WMAX}\ns_waitcnt lgkmcnt(0)")
    allred("v_max_f32",3,2,rows=False,cross=False)
    A(f"""s_mov_b32 s26, {C1}
    v_mul_f32 v2, s26, v3
    v_readfirstlane_b32 s56, v3""")
    for k in range(8): A(f"v_fma_f32 v{24+k}, v{24+k}, s26, -v2")
    for k in range(8): A(f"v_exp_f32 v{24+k}, v{24+k}")
    A("v_add_f32 v3, v24, v25")
    for k in range(2,8): A(f"v_add_f32 v3, v3, v{24+k}")
    for k in range(4): A(f"v_cvt_pk_bf16_f32 v{32+k}, v{24+2*k}, v{25+2*k}")
    A("s_mov_b32 exec_lo, 0x00ff00ff\ns_mov_b32 exec_hi, 0x00ff00ff\nds_write_b128 v12, v[32:35]\ns_mov_b64 exec, -1")
    allred("v_add_f32",3,2)
    A(f"v_mul_f32 v3, 0.5, v3\ns_mov_b64 exec, 1\nds_write_b32 v9, v3 offset:{O_WSUM}\ns_mov_b64 exec, -1")
    setflag(O_WFLAG,4)
    A(f"""v_bfe_u32 v3, v0, 2, 4
    v_and_b32 v1, 7, v3
    s_lshl_b32 s25, s4, 1
    v_xor_b32 v1, s25, v1
    v_lshlrev_b32 v1, 5, v1
    v_lshl_add_u32 v1, v3, 9, v1
    v_and_b32 v3, 3, v0
    v_lshl_add_u32 v11, v3, 3, v1
    v_xor_b32 v12, 32, v11""")
    waitflag(O_WFLAG,4)
    A(f"ds_read_b32 v3, v8 offset:{O_WSUM}\ns_waitcnt lgkmcnt(0)")
    allred("v_add_f32",3,2,rows=False,cross=False)
    A(f"""s_nop 0
    v_readfirstlane_b32 s57, v3
    s_cmp_lg_u32 s4, 3
    s_cbranch_scc1 L_noml
    v_mov_b32 v24, s56
    v_mov_b32 v25, v3
    v_mov_b32 v26, 0
    v_mov_b32 v27, 0
    v_mov_b32 v1, {R_ML}""")
    tag(24)
    A(f"""s_mov_b64 exec, 1
    {"" if NOY&2 else "buffer_store_dwordx4 v[24:27], v1, s[16:19], 0 offen YF"}
    s_mov_b64 exec, -1
    L_noml:
    s_mov_b32 s28, 64
    s_cmp_ge_u32 s6, 28
    s_cbranch_scc1 L_noy""")
    A(f"""v_lshrrev_b32 v2, 3, v0
    s_mul_i32 s25, s4, 224
    s_add_u32 s25, s25, {RED+4096}
    v_lshl_add_u32 v2, v2, 2, s25""")
    for i in range(7): A(f"ds_read_b32 v{W+i}, v2 offset:{32*i}")
    A("s_waitcnt vmcnt(0) lgkmcnt(0)")
    for i in range(7):
        for d in range(4):
            A(f"v_lshlrev_b32 v{24+2*d}, 16, v{W+64+4*i+d}\nv_and_b32 v{25+2*d}, 0xffff0000, v{W+64+4*i+d}")
        for e in range(8): A(f"{'v_fmac_f32' if i else 'v_mul_f32'} v{16+e}, v{24+e}, v{W+i}")
    A("s_nop 1")
    for e in range(4): A(f"v_permlane32_swap_b32 v{16+e}, v{20+e}")
    A("s_nop 1")
    for e in range(4): A(f"v_add_f32 v{16+e}, v{16+e}, v{20+e}")
    A("s_nop 1")
    for e in range(2): A(f"v_permlane16_swap_b32 v{16+e}, v{18+e}")
    A("s_nop 1")
    for e in range(2): A(f"v_add_f32 v{16+e}, v{16+e}, v{18+e}")
    for r in (8,):
        A("s_nop 1")
        for e in range(2): A(f"v_add_f32_dpp v{16+e}, v{16+e}, v{16+e} row_ror:{r} row_mask:0xf bank_mask:0xf")
    A(f"""v_lshrrev_b32 v2, 4, v0
    v_and_b32 v3, 7, v0
    v_lshlrev_b32 v2, 3, v2
    v_lshl_add_u32 v2, v3, 5, v2
    s_lshl_b32 s25, s4, 8
    s_add_u32 s25, s25, {RED}
    v_add_u32 v2, s25, v2
    s_mov_b32 exec_lo, 0x00ff00ff
    s_mov_b32 exec_hi, 0x00ff00ff
    ds_write_b64 v2, v[16:17]
    s_mov_b64 exec, -1""")
    setflag(O_WFLAG,5)
    A(f"""s_cmp_lg_u32 s4, 1
    s_cbranch_scc1 L_noy
    v_lshlrev_b32 v2, 2, v0
    v_add_u32 v3, {RED}, v2""")
    waitflag(O_WFLAG,5)
    for c in range(4): A(f"ds_read2st64_b32 {v(16+2*c,2)}, v3 offset0:{2*c} offset1:{2*c+1}")
    ltag(1,0)
    A("v_mov_b32 v3, 0xffffff00\ns_waitcnt lgkmcnt(0)")
    for c in range(1,8): A(f"v_add_f32 v16, v16, v{16+c}")
    A(f"""v_and_or_b32 v16, v16, v3, v1
    {"" if NOY&4 else f"buffer_store_dword v16, v2, s[16:19], 0 offen offset:{R_Y} YF"}""")
    A("L_noy:")
    srd(12,42,4096*448*2)
    A(f"""v_lshrrev_b32 v2, 4, v0
    v_and_b32 v3, 15, v0
    v_mul_u32_u24 v2, {4*896}, v2
    v_lshl_add_u32 v2, v3, 4, v2
    v_cmp_gt_u32 vcc, 8, v3
    s_lshr_b32 s24, s6, 1
    s_lshl_b32 s24, s24, 3
    s_add_u32 s24, s24, s4
    s_mul_i32 s24, s24, {32*896}
    v_mov_b32 v3, 0x40000000
    v_cndmask_b32 v38, v3, v2, vcc""")
    def wold(a,r):
        for blk in range(4):
            if not NOWO: A(f"buffer_load_dwordx4 {w((a*4+r)*16+blk*4)}, v{38 if blk==3 else 39}, s[12:15], s62 offen offset:{r*896+blk*256} {WF}")
        if a==0 and r==3: A(f"s_add_u32 s62, s62, {16*896}")
    A("v_mov_b32 v39, v2\ns_mov_b32 s62, s24")
    for k in range(16,24): A(f"v_mov_b32 v{k}, 0")
    assert WO0+9*TR<=127
    A(f"s_mul_i32 s60, s4, {TR}\ns_lshr_b32 s60, s60, {0 if WOS else 3}\ns_add_u32 s60, s60, {WO0}\ns_mov_b32 s27, 0\ns_mov_b32 s63, 0")
    if CT: A(f"""s_cmp_eq_u32 s4, {CW}
    s_cselect_b32 s94, {72+CW}, 0
    s_cselect_b32 s95, s93, 1
    s_cmp_eq_u32 s93, 0
    s_cselect_b32 s94, 0, s94
    s_mov_b32 s93, s95""")
    stamp(3)
    A(f"""L_v_loop:
    s_add_u32 s28, s28, 1
    v_add_u32 v2, s27, v11
    v_add_u32 v3, s27, v12
    ds_read_b128 v[32:35], v13""")
    waitflag(O_READY,"s28",SLEEP)
    A(f"""ds_read_b64_tr_b16 v[24:25], v2
    ds_read_b64_tr_b16 v[26:27], v2 offset:8192
    ds_read_b64_tr_b16 v[28:29], v3
    ds_read_b64_tr_b16 v[30:31], v3 offset:8192
    v_mov_b32 v1, s28
    v_add_u32 v13, 64, v13
    s_add_u32 s27, s27, {SLOT}
    s_and_b32 s27, s27, {NS*SLOT-1}
    s_mov_b64 exec, 1
    ds_write_b32 v9, v1 offset:{O_DONE}
    s_mov_b64 exec, -1
    s_waitcnt lgkmcnt(3)
    v_mfma_f32_16x16x32_bf16 v[16:19], v[24:27], v[32:35], v[16:19]
    s_waitcnt lgkmcnt(1)
    v_mfma_f32_16x16x32_bf16 v[20:23], v[28:31], v[32:35], v[20:23]""")
    if CT:
        pace_pub("s28")
        A(f"s_cmp_lg_u32 s28, s94\ns_cbranch_scc1 L_v_nopg\ns_add_u32 s94, s94, {CV}\ns_cmp_lt_u32 s94, {SCHED[0][1]-3}\ns_cselect_b32 s94, s94, 0")
        pace_get("s28"); A("L_v_nopg:")
    A(f"""s_cmp_lg_u32 s28, s60
    s_cbranch_scc1 L_v_loop
    s_cmp_lg_u32 s28, {128-2*SP}
    s_cbranch_scc1 L_vev""")
    if WM&1: L.append(";WB")
    if SP:
        A(f"""s_lshr_b32 s25, s4, 2
        s_mul_i32 s28, s25, {SP}
        s_add_u32 s28, s28, {129-2*SP}
        s_mul_i32 s25, s25, {SP*SLOT-256}
        s_add_u32 s27, s27, s25
        v_add_u32 v2, s27, v11
        v_add_u32 v3, s27, v12""")
        for pr in range(SP-1):
            A("ds_read_b128 v[32:35], v13\nds_read_b128 v[36:39], v13 offset:64")
            waitflag(O_READY,"s28",SLEEP)
            for hh in range(2):
                for r,a in ((24,2),(28,3)): A(f"ds_read_b64_tr_b16 {v(r,2)}, v{a} offset:{256*hh}\nds_read_b64_tr_b16 {v(r+2,2)}, v{a} offset:{8192+256*hh}")
                for k in range(2): A(f"s_waitcnt lgkmcnt({2-2*k})\nv_mfma_f32_16x16x32_bf16 {v(16+4*k,4)}, {v(24+4*k,4)}, {v(32+4*hh,4)}, {v(16+4*k,4)}")
            A(f"s_add_u32 s28, s28, 1\nv_add_u32 v2, {SLOT}, v2\nv_add_u32 v3, {SLOT}, v3\nv_add_u32 v13, 128, v13")
        A(f"""ds_read_b128 v[32:35], v13
        ds_read_b128 v[36:39], v13 offset:64""")
        waitflag(O_READY,"s28",SLEEP)
        for k,(r,a) in enumerate(((24,2),(28,3),(8,2),(12,3))):
            A(f"ds_read_b64_tr_b16 {v(r,2)}, v{a} offset:{256*(k>>1)}\nds_read_b64_tr_b16 {v(r+2,2)}, v{a} offset:{8192+256*(k>>1)}")
        for k,r in enumerate((24,28,8,12)):
            A(f"s_waitcnt lgkmcnt({6-2*k})\nv_mfma_f32_16x16x32_bf16 {v(16+4*(k&1),4)}, {v(r,4)}, {v(32+4*(k>>1),4)}, {v(16+4*(k&1),4)}")
    stamp(4)
    A(f"""s_lshl_b32 s25, s4, 11
    s_add_u32 s25, s25, {RED}
    v_and_b32 v2, 63, v0
    v_lshl_add_u32 v2, v2, 4, s25
    s_cmp_gt_u32 s4, 2
    s_subb_u32 s25, s4, 0
    s_nop 0""")
    for k in range(8): A(f"v_mul_f32 v{16+k}, s58, v{16+k}")
    for k in range(8): A(f"v_cvt_pk_bf16_f32 v{16+k}, v{16+k}, v{16+k}")
    def b1(s):
        for r in range(4): A(f"v_and_b32 v{32+r}, v{4+r}, v{16+s}")
    def b2(s):
        for r in range(4): A(f"v_and_b32_dpp v{36+r}, v{4+r}, v{16+s} row_ror:8 row_mask:0xf bank_mask:0xf")
    b1(0); b2(0)
    for s in range(8):
        for u in range(2):
            c="0" if s==0 else v(24+4*u,4)
            A(f"v_mfma_f32_16x16x32_bf16 {v(24+4*u,4)}, {w(s*16+u*8)}, v[32:35], {c}")
        if s<7: b1(s+1)
        for u in range(2):
            A(f"v_mfma_f32_16x16x32_bf16 {v(24+4*u,4)}, {w(s*16+u*8+4)}, v[36:39], {v(24+4*u,4)}")
        if s<7: b2(s+1)
    if WM&1: L.append(";WE")
    if WM&2: L.append(";WB")
    A(f"""s_lshr_b32 s24, s25, 2
    s_lshl_b32 s24, s24, 10
    s_bitcmp1_b32 s25, 0
    s_cselect_b32 s27, 512, 0
    s_add_u32 s24, s24, s27
    s_bitcmp1_b32 s25, 1
    s_cselect_b32 s27, 128, 0
    s_add_u32 s24, s24, s27
    s_add_u32 s24, s24, {RED}
    v_bfe_u32 v3, v0, 5, 1
    v_and_b32 v1, 7, v0
    v_lshlrev_b32 v3, 8, v3
    v_lshl_add_u32 v3, v1, 4, v3
    v_bfe_u32 v1, v0, 3, 2
    v_lshl_add_u32 v3, v1, 2, v3
    v_add_u32 v3, s24, v3
    ds_write_b128 v2, v[24:27]
    ds_write_b128 v2, v[28:31] offset:1024""")
    ltag(1,0)
    A(f"""s_lshl_b32 s25, s25, 8
    v_lshlrev_b32 v2, 2, v0
    s_cmp_eq_u32 s4, 2
    s_waitcnt lgkmcnt(0)
    s_barrier
    s_cbranch_scc1 L_final""")
    for c in range(4): A(f"ds_read2st64_b32 {v(16+2*c,2)}, v3 offset0:{16*c} offset1:{16*c+8}")
    A(f"""s_waitcnt lgkmcnt(2)
    v_add_f32 v16, v16, v17
    v_add_f32 v18, v18, v19
    s_waitcnt lgkmcnt(0)
    v_add_f32 v20, v20, v21
    v_add_f32 v22, v22, v23
    v_add_f32 v16, v16, v18
    v_add_f32 v20, v20, v22
    v_mov_b32 v3, 0xffffff00
    v_add_f32 v16, v16, v20
    v_and_or_b32 v16, v16, v3, v1
    {"" if NOY&8 else "buffer_store_dword v16, v2, s[16:19], s25 offen sc1"}""")
    stamp(5)
    A("s_branch L_exit")
    if WM&2: L.append(";WE")
    A("L_vev:")
    if WOS:
        A(f"s_add_u32 s60, s60, 1\ns_add_u32 s63, s63, 1")
        for e in range(WOS): A(f"s_cmp_eq_u32 s63, {e+1}\ns_cbranch_scc1 L_wo{e}")
        A("s_branch L_vev2")
        for e in range(WOS):
            A(f"L_wo{e}:")
            for k in range(e*8//WOS,(e+1)*8//WOS): wold(k>>2,k&3)
            if e==WOS-1: A(f"s_lshr_b32 s60, s4, 1\ns_add_u32 s60, s60, {WO0+7*TR+WOS}")
            A("s_branch L_v_loop")
        A("L_vev2:")
    elif TR:
        A(f"s_add_u32 s60, s60, {TR}\ns_add_u32 s63, s63, 1")
        for e in range(8): A(f"s_cmp_eq_u32 s63, {e+1}\ns_cbranch_scc1 L_wo{e}")
        A("s_branch L_vev2")
        for e in range(8):
            A(f"L_wo{e}:"); wold(e>>2,e&3); A("s_branch L_v_loop")
        A("L_vev2:")
    A(f"""s_mov_b32 s60, {128-2*SP}
    s_xor_b32 s24, s7, 1
    s_mul_i32 s24, s24, {RECSZ}
    v_mov_b32 v36, {RECB+R_ML}
    L_mlp:""")
    wd()
    A("buffer_load_dwordx4 v[28:31], v36, s[20:23], s24 offen YF\ns_waitcnt vmcnt(0)")
    untag(28,4,1)
    A(f"""{"" if NOY&2 else "s_cbranch_vccnz L_mlp"}
    v_mov_b32 v2, v28
    v_mov_b32 v3, v29
    v_max_f32 v24, s56, v2
    v_sub_f32 v25, s56, v24
    v_sub_f32 v2, v2, v24
    v_mul_f32 v25, s26, v25
    v_mul_f32 v2, s26, v2
    v_exp_f32 v25, v25
    v_exp_f32 v2, v2
    s_nop 0
    v_mul_f32 v3, v3, v2
    v_fma_f32 v3, v25, s57, v3
    v_rcp_f32 v3, v3
    s_nop 0
    v_mul_f32 v15, v25, v3
    s_nop 0
    v_readfirstlane_b32 s58, v15
    s_cmp_lg_u32 s4, 2
    s_cbranch_scc1 L_v_loop
    s_cmp_ge_u32 s6, 28
    s_cbranch_scc1 L_v_loop
    s_branch L_gy
    L_final:""")
    if WM&2: L.append(";WB")
    stamp(5)
    A(f"""s_cmp_ge_u32 s6, 28
    s_cbranch_scc1 L_exit
    v_and_b32 v1, 63, v0
    v_lshlrev_b32 v1, 2, v1
    v_add_u32 v1, {FL+O_H}, v1
    ds_read_b32 v14, v1
    v_bfe_u32 v2, v0, 2, 4
    v_and_b32 v3, 3, v0
    v_mul_u32_u24 v2, {RECSZ}, v2
    v_lshl_add_u32 v2, v3, 4, v2
    s_mul_i32 s24, s5, {32*RECSZ}
    s_add_u32 s24, s24, {RECB+R_Z}
    s_lshl_b32 s25, s6, 6
    s_add_u32 s24, s24, s25
    s_add_u32 s25, s24, {16*RECSZ}
    s_mov_b64 s[86:87], 0
    L_gp:""")
    wd()
    A(f"""buffer_load_dwordx4 v[24:27], v2, s[20:23], s24 offen sc1
    buffer_load_dwordx4 v[28:31], v2, s[20:23], s25 offen sc1
    s_waitcnt vmcnt(0)
""")
    untag(24,8,1,MP)
    if NOY&16: pass
    elif MP==2: A("""s_and_b64 s[88:89], exec, vcc
    s_cbranch_scc0 L_gok
    s_or_b64 s[86:87], s[86:87], s[88:89]
    s_ff1_i32_b64 s85, s[86:87]
    s_lshl_b64 exec, 15, s85
    s_andn2_b64 s[86:87], s[86:87], exec
    s_branch L_gp
    L_gok:
    s_mov_b64 exec, s[86:87]
    s_mov_b64 s[86:87], 0
    s_cbranch_execnz L_gp
    s_mov_b64 exec, -1""")
    elif MP: A("s_and_b64 exec, exec, vcc\ns_cbranch_scc1 L_gp\ns_mov_b64 exec, -1")
    else: A("s_cbranch_vccnz L_gp")
    A(f"""v_add_f32 v24, v24, v28
    v_add_f32 v25, v25, v29
    v_add_f32 v26, v26, v30
    v_add_f32 v27, v27, v31
    s_nop 0
    v_permlane32_swap_b32 v24, v25
    v_permlane32_swap_b32 v26, v27
    s_nop 0
    v_add_f32 v24, v24, v25
    v_add_f32 v26, v26, v27
    s_nop 1
    v_permlane16_swap_b32 v24, v26
    s_nop 1
    v_add_f32 v24, v24, v26
    s_nop 1
    v_add_f32_dpp v24, v24, v24 row_ror:4 row_mask:0xf bank_mask:0xf
    s_nop 1
    v_add_f32_dpp v24, v24, v24 row_ror:8 row_mask:0xf bank_mask:0xf""")
    rnd(24)
    A("s_waitcnt lgkmcnt(0)\nv_mul_f32 v24, v24, v14")
    rnd(24)
    A(f"""v_and_b32 v1, 0xffff0000, v0
    v_and_b32 v2, 0x0000ffc0, v0
    v_add_f32 v24, v24, v1
    v_lshrrev_b32 v2, 5, v2
    v_cvt_pk_bf16_f32 v24, v24, v24
    buffer_store_short v24, v2, s[8:11], 0 offen {OF} ;
    s_cmp_lg_u32 s2, 0
    s_cbranch_scc1 L_exit
    v_mov_b32 v1, s84
    v_mov_b32 v2, 0
    s_mov_b64 exec, 1
    buffer_store_dword v1, v2, s[20:23], 0 offen sc1
    s_mov_b64 exec, -1
    L_exit:""")
    if WM&2: L.append(";WE")
    if PROF:
        stamp(6)
        A(f"""s_waitcnt lgkmcnt(0)
        s_lshl_b32 s24, s2, 8
        s_add_u32 s24, s24, {PROFBASE+32}
        s_cmp_gt_u32 s4, 2
        s_cbranch_scc1 L_end
        s_lshl_b32 s25, s4, 5
        s_add_u32 s24, s24, s25""")
        for k in range(7): A(f"v_mov_b32 v{24+k}, s{64+2*k}")
        A("""v_mov_b32 v1, 0
        s_mov_b64 exec, 1
        buffer_store_dwordx4 v[24:27], v1, s[20:23], s24 offen
        buffer_store_dwordx4 v[28:31], v1, s[20:23], s24 offen offset:16""")
    A("L_end:\ns_endpgm")
    A(f"""L_gy:
    v_and_b32 v1, 3, v0
    v_bfe_u32 v2, v0, 4, 1
    v_bfe_u32 v3, v0, 5, 1
    v_lshl_add_u32 v2, v2, 1, v3
    v_lshl_add_u32 v3, v1, 2, v2
    v_lshlrev_b32 v2, 3, v2
    v_bfe_u32 v28, s84, v2, 8
    v_lshlrev_b32 v2, 2, v3
    s_and_b32 s24, s7, 0xfc
    s_mul_i32 s24, s24, {RECSZ}
    s_and_b32 s25, s6, 3
    s_lshl_b32 s25, s25, 6
    s_add_u32 s24, s24, s25
    s_add_u32 s24, s24, {RECB+R_Y}
    s_add_u32 s25, s24, {2*RECSZ}
    L_yp:""")
    wd()
    for c in range(4): A(f"buffer_load_dword v{24+c}, v2, s[20:23], s{24+(c>>1)} offen offset:{(c&1)*RECSZ} YF")
    A("s_waitcnt vmcnt(0)")
    for c in range(4): A(f"v_xor_b32 v{24+c}, v28, v{24+c}")
    A(f"""v_or3_b32 v1, v24, v25, v26
    v_or_b32 v1, v1, v27
    v_and_b32 v1, 0xff, v1
    v_cmp_ne_u32 vcc, 0, v1
    {"" if NOY&4 else "s_cbranch_vccnz L_yp"}
    v_add_f32 v24, v24, v25
    v_add_f32 v26, v26, v27
    v_add_f32 v24, v24, v26""")
    rnd(24)
    A(f"""v_mul_f32 v1, {f2u(-1.4426950408889634)}, v24
    v_exp_f32 v1, v1
    s_nop 0
    v_add_f32 v1, 1.0, v1
    v_rcp_f32 v1, v1
    s_nop 0
    v_mul_f32 v14, v24, v1""")
    rnd(14)
    A(f"""v_lshlrev_b32 v1, 2, v0
    v_add_u32 v1, {FL+O_H}, v1
    ds_write_b32 v1, v14
    s_lshl_b32 s24, s6, 4
    v_add_u32 v3, s24, v3
    v_and_b32 v1, 15, v0
    v_cmp_gt_u32 vcc, 4, v1
    v_mov_b32 v1, 1023
    s_nop 0
    v_cndmask_b32 v3, v1, v3, vcc
    v_lshlrev_b32 v2, 1, v3
    s_mul_i32 s24, s5, 896
    s_add_u32 s8, s32, s24
    s_addc_u32 s9, s33, 0
    s_mov_b32 s10, 896
    s_mov_b32 s11, 0x20000
    buffer_load_ushort v1, v2, s[8:11], 0 offen nt
    s_add_u32 s8, s50, s24
    s_addc_u32 s9, s51, 0
    v_lshl_add_u32 v0, v3, 6, v0
    s_waitcnt vmcnt(0)
    v_lshl_add_u32 v0, v1, 16, v0
    s_branch L_v_loop""")
    if WM:
        import re
        def sz(l):
            m=l.split()[0]
            if m.startswith("s_"): return 8 if re.search(r"[ ,](0x[0-9a-f]+|\d{3,})\b",l) or "memreal" in m else 4
            if m in ("v_add_f32","v_mul_f32","v_and_b32","v_xor_b32","v_or_b32","v_mov_b32","v_lshlrev_b32","v_lshrrev_b32","v_add_u32","v_permlane32_swap_b32","v_permlane16_swap_b32") and not re.search(r"[ ,](0x[0-9a-f]+|\d{3,})\b",l): return 4
            return 8
        O=[];on=False;acc=0;n=0;hold=False
        for l in L:
            if l==";WB": on=True; acc=64; continue
            if l==";WE": on=False; continue
            if on and not l.endswith(":"):
                if acc+sz(l)>60 and not hold:
                    O.append(f"L_pad{n}:"); O.append(f"    s_cbranch_execz PADT{n}"); n+=1; acc=0
                acc+=sz(l)
                hold=l.strip().startswith(("s_and_b64 exec","s_cbranch_scc1 L_gp","v_cmp_ne_u32 vcc, 0, v1"))
            O.append(l)
        per=-(-n//WMW)
        for i,l in enumerate(O):
            m=re.search(r"PADT(\d+)",l)
            if m:
                k=int(m.group(1)); O[i]=l.replace(m.group(0),"L_wret" if (k+1)%per==0 or k==n-1 else f"L_pad{k+1}")
        i=O.index(";WENTRY")
        e=["    s_mov_b64 exec, 0"]
        for k in range(WMW):
            if k*per<n: e+=[f"    s_cmp_eq_u32 s4, {WMW-1-k}",f"    s_cbranch_scc1 L_pad{k*per}"]
        O[i:i+1]=e+["L_wret:","    s_mov_b64 exec, -1"]
        L[:]=O
    L.append(f""".section .rodata,"a"
.p2align 6
.amdhsa_kernel {name}
  .amdhsa_next_free_vgpr 168
  .amdhsa_next_free_sgpr 96
  .amdhsa_accum_offset 168
  .amdhsa_group_segment_fixed_size 0
  .amdhsa_kernarg_size 96
  .amdhsa_user_sgpr_count 2
  .amdhsa_user_sgpr_kernarg_segment_ptr 1
  .amdhsa_system_sgpr_workgroup_id_x 1
.end_amdhsa_kernel""")
    return "\n".join(L)+"\n"
if __name__=="__main__":
    kw=eval("dict(%s)"%(sys.argv[1] if len(sys.argv)>1 else ""))
    sys.stdout.write(gen(**kw))
```

```python
import sys, struct
NAME="recurrent_scan__mha_block_cached__geglu_ffn__decode_kernel"
def f2u(x): return struct.unpack("<I",struct.pack("<f",x))[0]

def gen(D=20, PROF=0, XF="", WF="", SLEEP=0, WD=0, NOFF=0, NOWO=0, TR=5, D2=48, T2=112, ROT=1, ROTS=14, SFL="sc1", LFL="sc1", YF="sc1 nt", TOUCH=0, SCHED=None, NOQ=0, QW=10, WO0=68, E0=2, NOY=0, QL=1, MP=1, WDT=3, YS="sc1", YL="sc1", DX=22, TXG=(0,0,0,22,0,0,8,10), OF='', WM=0, WMW=4, TXX=(0,)*8, WQD=0, BAR=0, WOS=0, ST=0, PF=31, PFW=0, PFE=24, PFF='', HWV=2, SP=1, TXR=0, SK=1, CT=None, CB=1, PW=0, CW=5, CV=8, CLO=-2, SM=9, LB=1, SH=2, FS=1, name=NAME):
    L=[]
    def A(s):
        for ln in s.split("\n"):
            ln=ln.strip()
            if ln.endswith(" sc1"): ln=ln[:-3]+(SFL if "store" in ln else LFL)
            if ln.endswith(" YF"): ln=ln[:-2]+(((YS or YF) if "store" in ln else (YL or YF)))
            if ln: L.append(("" if ln.endswith(":") else "    ")+ln)
    NS=8; SLOT=16384
    PBUF=NS*SLOT; RED=PBUF+4096; FL=RED+16384
    O_READY=0; O_DONE=256; O_QF=288; O_WFLAG=320; O_WMAX=384; O_WSUM=448; O_CTL=480; O_H=512; PX=1024
    XN=FL+1024; XS=960
    LDS=XN+8*XS
    QX=4096; RECB=262144
    RECSZ=2304; R_Z=0; R_ML=1792; R_Y=2048; HX=RECB-65536
    TG=80
    PROFBASE=4<<20
    W=40
    def w(i,n=4): return f"v[{W+i}:{W+i+n-1}]"
    def v(i,n): return f"v[{i}:{i+n-1}]"
    C1=f2u(1.4426950408889634/16.0)
    hdr=open("recurrent_scan__mha_block_cached__geglu_ffn__decode.s.ref").read().split("; Override")[0]
    L.append(hdr.rstrip())
    L.append(f"; @launch grid=(256,1,1) block=(576,1,1) lds={LDS}")
    L.append('.amdgcn_target "amdgcn-amd-amdhsa--gfx950"\n.text')
    L.append(f".globl {name}\n.p2align 8\n.type {name},@function\n{name}:")
    def stamp(k):
        if PROF: A(f"s_memrealtime s[{64+2*k}:{65+2*k}]")
    def srd(d,ptr,size):
        A(f"s_mov_b32 s{d}, s{ptr}\ns_mov_b32 s{d+1}, s{ptr+1}\ns_mov_b32 s{d+2}, {size}\ns_mov_b32 s{d+3}, 0x20000")
    lab=[0]
    def newlab(p):
        lab[0]+=1; return f"L_{p}{lab[0]}"
    def wd():
        if WD: A("s_sub_u32 s61, s61, 1\ns_cbranch_scc1 L_end")
    def setflag(off,val):
        A(f"v_mov_b32 v1, {val}\ns_mov_b64 exec, 1\nds_write_b32 v9, v1 offset:{off}\ns_mov_b64 exec, -1")
    def waitflag(off,val,sleep=0):
        a=newlab("w"); b=newlab("wd")
        A(f"""{a}:
        ds_read_b32 v1, v8 offset:{off}
        s_waitcnt lgkmcnt(0)
        v_cmp_gt_i32 vcc, {val}, v1
        s_cbranch_vccz {b}""")
        if sleep: A(f"s_sleep {sleep}")
        wd()
        A(f"s_branch {a}\n{b}:")
    def allred(op,x,t,rows=True,cross=True):
        for m in ("quad_perm:[1,0,3,2]","quad_perm:[2,3,0,1]","row_half_mirror")+(("row_mirror",) if rows else ()):
            A(f"s_nop 1\n{op}_dpp v{x}, v{x}, v{x} {m} row_mask:0xf bank_mask:0xf")
        if cross:
            for p in ("v_permlane16_swap_b32","v_permlane32_swap_b32"):
                A(f"v_mov_b32 v{t}, v{x}\ns_nop 1\n{p} v{x}, v{t}\ns_nop 1\n{op} v{x}, v{x}, v{t}")
    def tag(x):
        for r in range(4): A(f"v_mov_b32_sdwa v{x+r}, s{TG+r} dst_sel:BYTE_0 dst_unused:UNUSED_PRESERVE src0_sel:BYTE_0")
        A("s_nop 0")
    def untag(x,n,t,quad=False):
        for r in range(n): A(f"v_xor_b32 v{x+r}, s{TG+(r&3)}, v{x+r}")
        A(f"v_or3_b32 v{t}, v{x}, v{x+1}, v{x+2}")
        for r in range(3,n-1,2): A(f"v_or3_b32 v{t}, v{t}, v{x+r}, v{x+r+1}")
        A(f"v_or_b32 v{t}, v{t}, v{x+n-1}")
        if quad:
            for m in ("[1,0,3,2]","[2,3,0,1]"): A(f"s_nop 1\nv_or_b32_dpp v{t}, v{t}, v{t} quad_perm:{m} row_mask:0xf bank_mask:0xf")
        A(f"v_and_b32 v{t}, 0xff, v{t}\nv_cmp_ne_u32 vcc, 0, v{t}")
    def ltag(x,sh):
        A(f"v_bfe_u32 v{x}, v0, {sh}, 2\nv_lshlrev_b32 v{x}, 3, v{x}\nv_bfe_u32 v{x}, s84, v{x}, 8")
    def rnd(x,t=None):
        A(f"v_cvt_pk_bf16_f32 v{x}, v{x}, v{x}\nv_and_b32 v{x}, 0xffff0000, v{x}")

    A(f"""s_cmp_ge_u32 s2, 256
    s_cbranch_scc1 L_end
    s_load_dwordx4 s[36:39], s[0:1], 8
    s_load_dwordx2 s[32:33], s[0:1], 0
    s_load_dwordx4 s[40:43], s[0:1], 24
    s_load_dwordx8 s[44:51], s[0:1], 48
    s_load_dwordx4 s[52:55], s[0:1], 80""")
    stamp(0)
    if WD: A(f"s_mov_b32 s61, {WD}")
    A(f"""v_lshrrev_b32 v1, 6, v0
    v_and_b32 v0, 63, v0
    v_readfirstlane_b32 s3, v1
    s_and_b32 s6, s2, 7
    s_lshl_b32 s6, s6, 2
    s_lshr_b32 s7, s2, 6
    s_add_u32 s6, s6, s7
    s_bfe_u32 s5, s2, 0x30003
    s_lshl_b32 s7, s5, 5
    s_add_u32 s7, s7, s6
    s_cmp_lg_u32 s3, 0
    s_cbranch_scc1 L_worker""")
    A("s_setprio 3")
    A(f"""v_lshlrev_b32 v8, 2, v0
    v_add_u32 v8, {FL}, v8
    v_mov_b32 v1, 0
    ds_write_b32 v8, v1 offset:0
    ds_write_b32 v8, v1 offset:256
    v_and_b32 v9, 7, v0
    v_lshlrev_b32 v9, 2, v9
    v_add_u32 v9, {FL}, v9""")
    A("""v_lshrrev_b32 v1, 5, v0
    v_lshlrev_b32 v2, 4, v0
    v_lshlrev_b32 v1, 5, v1
    v_xor_b32 v4, v2, v1
    v_xor_b32 v5, 64, v4
    v_xor_b32 v6, 0x80, v4
    v_xor_b32 v7, 0xc0, v4
    s_lshl_b32 s24, s7, 20
    s_waitcnt lgkmcnt(0)
    s_add_u32 s8, s36, s24
    s_addc_u32 s9, s37, 0
    s_mov_b32 s10, 0x100000
    s_mov_b32 s11, 0x20000
    s_add_u32 s12, s38, s24
    s_addc_u32 s13, s39, 0""")
    if SCHED is None: SCHED=[(D,T2),(D2,128)] if D2 else [(D,128)]
    sfl=[SCHED[0][2] if len(SCHED[0])>2 else "nt"]
    vb=[4]
    def ld(i): A(f"buffer_load_dwordx4 v{vb[0]+i}, s[8:11], s26 offen offset:{i*1024} {sfl[0]} lds")
    for q in range(4):
        if q==0: A(f"s_mul_i32 s26, s2, {ROT}\ns_lshl_b32 s26, s26, {ROTS}\ns_mov_b32 m0, 0\ns_and_b32 s26, s26, 0xfffff")
        else: A(f"s_add_u32 s26, s26, 4096\ns_mov_b32 m0, {q*4096}\ns_and_b32 s26, s26, 0xfffff")
        for i in range(4): ld(i)
        if q==BAR: A("s_barrier")
    A(f"""s_mov_b32 s25, 1
    s_mov_b32 s27, {SLOT}
    s_mov_b32 s29, 0
    v_mov_b32 v10, 0""")
    if PROF: A("s_mov_b32 s30, 0")
    if PROF: A("s_memrealtime s[70:71]\nv_mov_b32 v20, 0")
    def ldloop(nm,Dd,tend,ctl=False):
        lagi=(Dd+15)%16; lags=(Dd+15)//16
        A(f"""L_ld_loop{nm}:
        s_sub_u32 s28, s25, {NS-1}
        s_waitcnt lgkmcnt(0)""")
        if PROF: A("s_lshr_b32 m0, s25, 1\nv_writelane_b32 v20, s70, m0")
        A(f"""v_cmp_gt_i32 vcc, s28, v10
        s_cbranch_vccz L_ld_go{nm}
        L_ld_spin{nm}:""")
        if PROF: A("s_add_u32 s30, s30, 1")
        wd()
        A(f"""ds_read_b32 v10, v9 offset:{O_DONE}
        s_waitcnt lgkmcnt(0)
        v_cmp_gt_i32 vcc, s28, v10
        s_cbranch_vccnz L_ld_spin{nm}
        L_ld_go{nm}:""")
        for q in range(4):
            A(f"s_add_u32 s26, s26, 4096\ns_add_u32 m0, s27, {q*4096}\ns_and_b32 s26, s26, 0xfffff")
            for i in range(4):
                A(f"s_waitcnt vmcnt({Dd-1})")
                ld(i)
                if q*4+i==lagi:
                    A(f"s_sub_u32 s28, s25, {lags-1}\ns_max_i32 s29, s29, s28\nv_mov_b32 v2, s29\nds_write_b32 v8, v2 offset:{O_READY}")
                if q*4+i==14:
                    A(f"ds_read_b32 v10, v9 offset:{O_DONE}")
                    if ctl: A(f"ds_read_b32 v11, v9 offset:{O_CTL}")
                    if PROF: A("s_memrealtime s[70:71]")
        A(f"""s_add_u32 s25, s25, 1
        s_add_u32 s27, s27, {SLOT}
        s_and_b32 s27, s27, {NS*SLOT-1}
        s_cmp_eq_u32 s25, 64
        s_cselect_b32 s8, s12, s8
        s_cselect_b32 s9, s13, s9
        s_cmp_lt_u32 s25, {tend}
        s_cbranch_scc1 {"L_disp" if ctl else "L_ld_loop"+nm}""")
        if ctl: A("s_branch L_ld_loopb")
        return lags
    if DX:
        pk=lambda t: sum(x<<(8*i) for i,x in enumerate(t))
        A(f"""s_mov_b32 s14, {pk(TXG[:4])}
        s_mov_b32 s15, {pk(TXG[4:])}
        s_lshr_b32 s24, s2, 5
        s_lshl_b32 s24, s24, 3
        s_lshr_b64 s[14:15], s[14:15], s24
        s_mov_b32 s16, {pk(TXX[:4])}
        s_mov_b32 s17, {pk(TXX[4:])}
        s_and_b32 s24, s2, 7
        s_lshl_b32 s24, s24, 3
        s_lshr_b64 s[16:17], s[16:17], s24
        s_add_u32 s24, s14, s16
        s_and_b32 s24, s24, 0xff
        s_cbranch_scc0 L_ld_loopa
        s_add_u32 s24, s24, 1""")
        ldloop("x",DX,"s24")
    if CT:
        A("v_mov_b32 v11, 0\nL_disp:\ns_waitcnt lgkmcnt(0)\nv_readfirstlane_b32 s24, v11")
        for k in range(len(CT)-1): A(f"s_cmp_eq_i32 s24, {k+CLO}\ns_cbranch_scc1 L_ld_loopc{k}")
        for k in range(len(CT)-1,-1,-1): ldloop(f"c{k}",CT[k],SCHED[0][1],True)
    for k,sc in enumerate(SCHED):
        if CT and k==0: continue
        Dl,te=sc[:2]; sfl[0]=sc[2] if len(sc)>2 else "nt"
        lags=ldloop("abcdefgh"[k],Dl,min(te,128-2*SP))
    if SP:
        A("v_and_b32 v1, 16, v0\nv_cmp_eq_u32 vcc, 0, v1\ns_add_u32 s26, s26, 4096")
        for pr in range(SP):
            A("""s_and_b32 s26, s26, 0xfffff
            s_add_u32 s24, s26, 16384
            s_and_b32 s24, s24, 0xfffff
            s_sub_u32 s24, s24, 256
            v_mov_b32 v1, s24
            v_mov_b32 v3, s26
            s_add_u32 s26, s26, 32768
            v_cndmask_b32 v1, v1, v3, vcc""")
            for i in range(4): A(f"v_add_u32 v{24+4*pr+i}, v1, v{4+i}")
        for k in range(2*SP):
            vb[0]=24+4*(k%SP)
            A(f"s_mov_b32 s26, {0xff000+256*(k//SP)}")
            ldloop(f"z{k}",Dl,0)
    for u in range(128-lags,128):
        if LB and u==127: A("s_waitcnt vmcnt(0)\ns_barrier"); continue
        A(f"v_mov_b32 v2, {u+1}\ns_waitcnt vmcnt({min(Dl-1,16*(127-u))})\nds_write_b32 v8, v2 offset:{O_READY}")
    if PROF:
        stamp(1)
        srd(20,54,0x40000000)
        A(f"""s_waitcnt lgkmcnt(0)
        s_lshl_b32 s24, s2, 8
        s_add_u32 s24, s24, {PROFBASE}
        v_mov_b32 v4, s64
        v_mov_b32 v5, s66
        v_mov_b32 v6, s30
        s_getreg_b32 s31, hwreg(HW_REG_XCC_ID)
        v_mov_b32 v7, s31
        v_mov_b32 v1, 0
        v_lshlrev_b32 v2, 2, v0
        s_add_u32 s25, s24, 65536
        buffer_store_dword v20, v2, s[20:23], s25 offen
        s_mov_b64 exec, 1
        buffer_store_dwordx4 v[4:7], v1, s[20:23], s24 offen""")
    A("s_waitcnt lgkmcnt(0)\ns_endpgm")
    def pace_pub(sr):
        l=newlab("pp")
        A(f"""s_cmp_lg_u32 s93, 0
        s_cbranch_scc1 {l}
        s_and_b32 s85, s84, 0xffffff00
        s_or_b32 s85, s85, {sr}
        v_mov_b32 v14, s85
        v_mov_b32 v15, {PX}
        s_mov_b64 exec, 1
        buffer_store_dword v14, v15, s[20:23], 0 offen sc1
        s_mov_b64 exec, -1
        {l}:""")
    def pace_get(sr):
        A(f"""v_mov_b32 v15, {PX}
        s_and_b32 s85, s84, 0xffffff00
        s_mov_b64 exec, 1
        buffer_load_dword v14, v15, s[20:23], 0 offen sc1
        s_sub_u32 s86, {sr}, {CB}
        s_waitcnt vmcnt(0)
        v_mov_b32 v15, {FL+O_CTL}
        v_xor_b32 v14, s85, v14
        v_cmp_lt_u32 vcc, 0xff, v14
        v_subrev_u32 v14, s86, v14
        v_med3_i32 v14, v14, {CLO}, {CLO+len(CT)-1}
        v_cndmask_b32 v14, v14, 0, vcc
        ds_write_b32 v15, v14
        s_mov_b64 exec, -1""")
    def sweep(mask,early):
        n1,n2=(7168,8192) if SK else (6272,7168)
        A(f"""s_and_b32 s24, s2, 7
        s_mul_i32 s24, s24, {28 if SK else 32}
        s_lshr_b32 s25, s2, 3
        s_add_u32 s24, s24, s25""")
        if SK: A("s_lshr_b32 s25, s2, 7\ns_lshl_b32 s25, s25, 2\ns_sub_u32 s24, s24, s25")
        A(f"""s_mul_i32 s25, s24, {n1}
        s_mul_i32 s24, s24, {2*n2}
        s_cmp_ge_u32 s4, 5
        s_cselect_b32 s88, s40, s42
        s_cselect_b32 s89, s41, s43
        s_mov_b32 s90, {n2}
        s_mov_b32 s91, 0x20000
        s_bitcmp1_b32 s4, 0
        s_cselect_b32 s85, {n2}, 0
        s_add_u32 s24, s24, s85""")
        for c,pt in ((0,44),(1,46),(2,48)):
            A(f"""s_cmp_eq_u32 s4, {c}
            s_cselect_b32 s88, s{pt}, s88
            s_cselect_b32 s89, s{pt+1}, s89
            s_cselect_b32 s90, {n1}, s90
            s_cselect_b32 s24, s25, s24""")
        A(f"""s_add_u32 s88, s88, s24
        s_addc_u32 s89, s89, 0
        v_lshlrev_b32 v2, 4, v0
        v_add_u32 v38, 4096, v2
        s_lshr_b32 s24, {mask}, s4""")
        if SK: A("s_lshr_b32 s25, s2, 5\ns_cmp_eq_u32 s25, 3\ns_cselect_b32 s24, 0, s24")
        A("s_bitcmp1_b32 s24, 0")
        if early: A("s_cselect_b32 s90, s90, 0")
        else: A("s_cbranch_scc0 L_nopf")
        if PFW and not early: waitflag(O_READY,PFW,SLEEP)
        for i in range(7+SK): A(f"buffer_load_dwordx4 {w(96)}, v{38 if i>3 else 2}, s[88:91], 0 offen offset:{(i&3)*1024} {PFF}")
        if not early: A("L_nopf:")
    A(f"""L_worker:
    s_sub_u32 s4, s3, 1
    v_lshlrev_b32 v12, 4, v0
    s_mul_i32 s24, s4, 896
    s_mov_b32 s10, 896
    s_mov_b32 s11, 0x20000
    s_waitcnt lgkmcnt(0)
    s_add_u32 s8, s32, s24
    s_addc_u32 s9, s33, 0
    s_load_dword s84, s[54:55], 0
    buffer_load_dwordx4 v[16:19], v12, s[8:11], 0 offen {XF}
    s_barrier""")
    srd(12,40,448*4096*2)
    A("s_mov_b32 s27, 0\ns_mov_b32 s26, 0\nv_mov_b32 v21, 0\ns_cmp_lg_u32 s4, 7\ns_cbranch_scc1 L_nowq")
    A(f"""v_lshrrev_b32 v2, 1, v0
    v_and_b32 v3, 1, v0
    v_lshlrev_b32 v2, 13, v2
    v_lshl_add_u32 v21, v3, 4, v2
    s_and_b32 s26, s2, 7
    s_lshl_b32 s26, s26, 10
    s_lshr_b32 s27, s2, 3
    s_xor_b32 s27, s27, {TXR}
    s_lshl_b32 s27, s27, 5
    s_mov_b32 m0, {RED}
    s_add_u32 s26, s26, s27""")
    def wqld(i0,i1):
        for i in range(i0,i1):
            if not NOQ&1: A(f"buffer_load_dwordx4 v21, s[12:15], s26 offen {WF} lds")
            if i<13: A(f"s_mov_b32 m0, {RED+(i+1)*1024}\ns_add_u32 s26, s26, {32*8192}")
    wqld(0,14-WQD)
    if TOUCH:
        A("s_branch L_notouch\nL_nowq:")
        A(f"""s_lshl_b32 s24, s7, 20
        s_mov_b32 s25, 0x80000
        s_mov_b32 s12, s38
        s_mov_b32 s13, s39
        s_mov_b32 s14, 0x10000000""")
        def sel(c,ptr,size,o0,o1):
            A(f"""s_cmp_eq_u32 s4, {c}
            s_cselect_b32 s12, s{ptr}, s12
            s_cselect_b32 s13, s{ptr+1}, s13
            s_cselect_b32 s14, {size}, s14
            s_cselect_b32 s24, {o0}, s24
            s_cselect_b32 s25, {o1}, s25""")
        A(f"s_mul_i32 s26, s6, 112\ns_mul_i32 s27, s6, {56*896}\ns_lshr_b32 s28, s6, 1\ns_mul_i32 s28, s28, {256*896}\ns_mul_i32 s29, s5, 896")
        sel(1,44,448*1792*2,"s26",447*3584)
        sel(2,46,448*1792*2,"s26",447*3584)
        sel(3,48,448*1792*2,"s27",55*896)
        sel(4,42,448*4096*2,"s28",255*896)
        sel(5,50,8*896,"s29",512)
        sel(6,54,0x40000000,RECB-4096,256*RECSZ+8192)
        A(f"""v_mul_lo_u32 v2, v0, s25
        s_mov_b64 exec, 3
        buffer_load_dword v{W+119}, v2, s[12:15], s24 offen nt
        s_mov_b64 exec, -1
        L_notouch:""")
    elif PFE:
        A("s_branch L_nosw\nL_nowq:"); sweep(PFE,True); A("L_nosw:")
    else: A("L_nowq:")
    A(f"""s_mul_i32 s24, s7, {RECSZ}
    s_add_u32 s24, s24, {RECB}
    s_add_u32 s16, s54, s24
    s_addc_u32 s17, s55, 0
    s_mov_b32 s18, {RECSZ}
    s_mov_b32 s19, 0x20000""")
    srd(20,54,0x40000000)
    A(f"""v_and_b32 v3, 15, v0
    v_and_b32 v1, 1, v3
    v_cmp_eq_u32 vcc, 1, v1
    v_mov_b32 v14, 0xffff
    v_mov_b32 v15, 0xffff0000
    v_cndmask_b32 v14, v14, v15, vcc
    v_lshrrev_b32 v1, 1, v3""")
    for r in range(4):
        A(f"v_cmp_eq_u32 vcc, {r}, v1\ns_nop 1\nv_cndmask_b32 v{4+r}, 0, v14, vcc")
    A(f"""v_and_b32 v8, 7, v0
    v_lshlrev_b32 v8, 2, v8
    v_add_u32 v8, {FL}, v8
    s_lshl_b32 s25, s4, 2
    s_add_u32 s25, s25, {FL}
    v_mov_b32 v9, s25
    v_add_u32 v10, {RED}, v12
    s_lshl_b32 s25, s4, 10
    v_add_u32 v11, s25, v10
    s_mul_i32 s25, s4, {XS}
    s_add_u32 s25, s25, {XN}
    v_add_u32 v12, s25, v12""")
    setflag(O_DONE,"s4")
    KA=W+124
    A(f"""v_lshrrev_b32 v2, 4, v0
    v_and_b32 v3, 7, v0
    v_lshlrev_b32 v13, 4, v2
    v_add_u32 v13, {PBUF}, v13
    v_lshlrev_b32 v3, 1, v3
    v_xor_b32 v3, v3, v2
    v_lshlrev_b32 v3, 4, v3
    v_and_b32 v2, 15, v0
    v_lshl_add_u32 v3, v2, 9, v3
    s_lshl_b32 s25, s4, 14
    v_add_u32 v{KA}, s25, v3
    v_xor_b32 v{KA+1}, 64, v{KA}
    v_xor_b32 v{KA+2}, 0x80, v{KA}
    v_xor_b32 v{KA+3}, 0xc0, v{KA}""")
    A("""s_cmp_lg_u32 s4, 7
    s_cbranch_scc1 L_xw0
    s_waitcnt vmcnt(""" + ("0" if NOQ&1 else str(14-WQD)) + """)""")
    wqld(14-WQD,14)
    A("""s_branch L_xw1
    L_xw0:
    s_waitcnt vmcnt(""" + str(1 if TOUCH else 7+SK if PFE else 0) + """)
    L_xw1:""")
    for k in range(4):
        A(f"v_lshlrev_b32 v{32+2*k}, 16, v{16+k}\nv_and_b32 v{33+2*k}, 0xffff0000, v{16+k}")
    A("v_add_f32 v1, v32, v33")
    for k in range(2,8): A(f"v_add_f32 v1, v1, v{32+k}")
    allred("v_add_f32",1,2)
    A(f"v_mul_f32 v1, {f2u(1.0/448)}, v1\nv_mov_b32 v3, 0")
    for k in range(8): A(f"v_sub_f32 v2, v{32+k}, v1\nv_fmac_f32 v3, v2, v2")
    A("v_cmp_gt_u32 vcc, 56, v0\ns_nop 1\nv_cndmask_b32 v3, 0, v3, vcc")
    allred("v_add_f32",3,2)
    A(f"v_mul_f32 v3, {f2u(1.0/448)}, v3")
    rnd(1); rnd(3)
    A(f"v_add_f32 v3, {f2u(1e-5)}, v3"); rnd(3)
    A("v_sqrt_f32 v3, v3\ns_nop 0"); rnd(3)
    A("v_rcp_f32 v2, v3\ns_nop 0")
    A("v_fma_f32 v14, -v3, v2, 1.0\nv_fmac_f32 v2, v14, v2")
    for k in range(8): A(f"v_sub_f32 v{32+k}, v{32+k}, v1")
    for k in range(8): rnd(32+k)
    for k in range(8): A(f"v_mul_f32 v{24+k}, v{32+k}, v2")
    for k in range(8): A(f"v_fma_f32 v{32+k}, -v{24+k}, v3, v{32+k}")
    for k in range(8): A(f"v_fmac_f32 v{24+k}, v{32+k}, v2")
    for k in range(4): A(f"v_cvt_pk_bf16_f32 v{16+k}, v{24+2*k}, v{25+2*k}")
    A(f"""s_mov_b32 exec_hi, 0x00ffffff
    ds_write_b128 v12, v[16:19]
    s_mov_b32 exec_hi, -1
    s_waitcnt lgkmcnt(0)
    s_add_u32 s84, s84, 0x01010101
    s_and_b32 s{TG}, s84, 0xff
    s_bfe_u32 s{TG+1}, s84, 0x80008
    s_bfe_u32 s{TG+2}, s84, 0x80010
    s_lshr_b32 s{TG+3}, s84, 24""")
    setflag(O_WFLAG,1)
    if ST:
        A(f"""s_lshr_b32 s24, s2, 3
        s_lshl_b32 s24, s24, 3
        s_add_u32 s24, s24, s4
        s_add_u32 s25, s24, 256
        s_min_u32 s25, s25, 391
        s_lshl_b32 s25, s25, 12
        s_min_u32 s85, s24, 111
        s_lshl_b32 s24, s24, 12
        s_and_b32 s86, s2, 7
        s_mul_i32 s86, s86, 112
        s_add_u32 s85, s85, s86
        s_lshl_b32 s85, s85, 12
        s_load_dword s86, s[44:45], s24
        s_load_dword s87, s[44:45], s25
        s_load_dword s88, s[46:47], s24
        s_load_dword s89, s[46:47], s25
        s_load_dword s90, s[48:49], s24
        s_load_dword s91, s[48:49], s25
        s_load_dword s92, s[42:43], s85""")
    A("s_cmp_lg_u32 s4, 7\ns_cbranch_scc1 L_noq")
    A(f"""v_lshrrev_b32 v2, 4, v0
    v_and_b32 v3, 15, v0
    v_lshlrev_b32 v14, 8, v2
    v_lshl_add_u32 v14, v3, 3, v14
    v_add_u32 v14, {RED}, v14
    v_and_b32 v1, 7, v0
    v_mul_u32_u24 v15, {XS}, v1
    v_lshl_add_u32 v15, v2, 4, v15
    v_add_u32 v15, {XN}, v15
    v_lshlrev_b32 v3, {6 if QL else 14}, v3
    v_lshl_add_u32 v2, v2, 4, v3
    s_and_b32 s24, s2, 7
    s_lshl_b32 s24, s24, {14 if QL else 11}
    s_lshr_b32 s25, s2, 3
    s_xor_b32 s25, s25, {TXR}
    s_lshl_b32 s25, s25, {9 if QL else 6}
    s_add_u32 s24, s24, s25
    s_add_u32 s24, s24, {QX}""")
    if QL: A(f"""s_lshr_b32 s25, s6, 1
    s_lshl_b32 s25, s25, 13
    s_lshl_b32 s26, s5, 6
    s_add_u32 s25, s25, s26
    s_add_u32 s25, s25, {QX}
    v_lshrrev_b32 v1, 2, v0
    v_and_b32 v3, 3, v0
    v_lshlrev_b32 v3, 4, v3
    v_lshl_add_u32 v3, v1, 9, v3""")
    else: A(f"""s_lshr_b32 s25, s7, 1
    s_lshl_b32 s25, s25, 10
    s_add_u32 s25, s25, {QX}
    v_lshlrev_b32 v3, 4, v0""")
    waitflag(O_WFLAG,1)
    for st in range(14): A(f"ds_read_b128 {w(st*4)}, v15 offset:{st*64}")
    A("s_waitcnt vmcnt(0) lgkmcnt(0)")
    def trr(st):
        A(f"ds_read_b64_tr_b16 {w(56+st*4,2)}, v14 offset:{st*1024}\nds_read_b64_tr_b16 {w(58+st*4,2)}, v14 offset:{st*1024+128}")
    for st in range(7): trr(st)
    for st in range(14):
        A(f"s_waitcnt lgkmcnt({min(12,2*(13-st))})")
        c="0" if st<2 else v(16+4*(st&1),4)
        A(f"v_mfma_f32_16x16x32_bf16 {v(16+4*(st&1),4)}, {w(56+st*4)}, {w(st*4)}, {c}")
        if st+7<14: trr(st+7)
    A("s_nop 7")
    for r in range(4): A(f"v_add_f32 v{16+r}, v{16+r}, v{20+r}")
    for r in range(4): rnd(16+r)
    for r in range(4): A(f"v_or_b32 v{16+r}, s{TG+r}, v{16+r}")
    A(f"""s_mov_b32 exec_lo, 0x00ff00ff
    s_mov_b32 exec_hi, 0x00ff00ff
    {"" if NOQ&2 else "buffer_store_dwordx4 v[16:19], v2, s[20:23], s24 offen sc1"}
    s_mov_b64 exec, -1
    v_lshlrev_b32 v14, 3, v0
    v_add_u32 v14, {PBUF}, v14
    s_mov_b32 s26, 0x07060302
    s_mov_b32 s27, s25
    L_noq:""")
    SF=W+120
    A(f"""s_mov_b32 s28, 0
    s_add_u32 s29, s4, 1
    s_mov_b32 s30, 0x01010101
    s_mov_b32 s31, 0x01010101""")
    waitflag(O_READY,"s29",SLEEP)
    for half in range(2):
        for jj in range(4):
            for ab in range(2):
                A(f"ds_read_b128 {w(32+half*32+(jj*2+ab)*4)}, v{KA+jj} offset:{half*256+ab*8192}")
        if half==0: A("s_waitcnt lgkmcnt(4)")
    A("s_add_u32 s25, s4, 8")
    setflag(O_DONE,"s25")
    if PF&~PFE: sweep(PF&~PFE,False)
    if WM: L.append(";WENTRY")
    A("s_cmp_lg_u32 s4, 7\ns_cbranch_scc1 L_noq2")
    if QW: waitflag(O_READY,QW,SLEEP)
    A("L_qp:")
    wd()
    if not NOQ&4: A("buffer_load_dwordx4 v[20:23], v3, s[20:23], s27 offen sc1\ns_waitcnt vmcnt(0)")
    untag(20,4,1)
    if NOQ:
        for r in range(4): A(f"v_mov_b32 v{20+r}, 0")
    A(f"""{"" if NOQ&6 else "s_cbranch_vccnz L_qp"}
    v_perm_b32 v20, v21, v20, s26
    v_perm_b32 v21, v23, v22, s26
    v_mov_b32 v1, 1
    ds_write_b64 v14, v[20:21]
    ds_write_b32 v8, v1 offset:{O_QF}
    L_noq2:""")
    waitflag(O_QF,1,SLEEP)
    stamp(1)
    for jj in range(8): A(f"ds_read_b128 {w(4*jj)}, v13 offset:{64*jj}")
    A("s_waitcnt lgkmcnt(0)")
    for half in range(2):
        for jj in range(4):
            for ab in range(2):
                c="0" if (half==0 and jj==0) else v(16+4*ab,4)
                A(f"v_mfma_f32_16x16x32_bf16 {v(16+4*ab,4)}, {w(32+half*32+(jj*2+ab)*4)}, {w((half*4+jj)*4)}, {c}")
    if CT: A(f"s_xor_b32 s93, s2, {PW}")
    A("s_branch L_k_tail\nL_k_loop:")
    waitflag(O_READY,"s29",SLEEP)
    if CT: pace_pub("s29")
    for half in range(2):
        for jj in range(4):
            for ab in range(2):
                A(f"ds_read_b128 {w(32+(jj*2+ab)*4)}, v{KA+jj} offset:{half*256+ab*8192}")
        for jj in range(4):
            for ab in range(2):
                A(f"s_waitcnt lgkmcnt({7-jj*2-ab})")
                c="0" if (half==0 and jj==0) else v(16+4*ab,4)
                A(f"v_mfma_f32_16x16x32_bf16 {v(16+4*ab,4)}, {w(32+(jj*2+ab)*4)}, {w((half*4+jj)*4)}, {c}")
    A("L_k_tail:")
    A(f"""s_add_u32 s29, s29, 8
    s_sub_u32 s25, s29, 1
    s_min_u32 s25, s25, 64""")
    setflag(O_DONE,"s25")
    A("s_nop 3\ns_mov_b64 exec, s[30:31]")
    for k in range(4): A(f"v_cvt_pk_bf16_f32 v{SF+k}, v{16+2*k}, v{17+2*k}")
    A(f"""s_mov_b64 exec, -1
    s_lshl_b64 s[30:31], s[30:31], 1
    s_add_u32 s28, s28, 1
""")
    if CT:
        A(f"s_cmp_lg_u32 s4, {CW}\ns_cbranch_scc1 L_k_nopg\ns_cmp_lt_u32 s28, 2\ns_cbranch_scc1 L_k_nopg\ns_cmp_eq_u32 s93, 0\ns_cbranch_scc1 L_k_nopg\ns_sub_u32 s87, s29, 8")
        pace_get("s87"); A("L_k_nopg:")
    A("s_cmp_ge_u32 s6, 28\ns_cbranch_scc1 L_k_noev")
    for e in range(1,5): A(f"s_cmp_eq_u32 s28, {e+E0-1}\ns_cbranch_scc1 L_ev1_{e}")
    A(f"""s_cmp_eq_u32 s28, {E0+4}
    s_cbranch_scc1 L_ev2
    s_cmp_eq_u32 s28, {E0+5}
    s_cbranch_scc1 L_ev3
    L_k_noev:
    s_cmp_lt_u32 s28, 8
    s_cbranch_scc1 L_k_loop
    s_branch L_mid""")
    A("L_ev1_1:")
    srd(12,44,448*1792*2)
    A(f"""v_lshrrev_b32 v2, 4, v0
    v_and_b32 v3, 7, v0
    v_mul_u32_u24 v2, {14*3584}, v2
    v_lshl_add_u32 v2, v3, 4, v2
    s_mul_i32 s24, s4, {56*3584}
    s_lshl_b32 s25, s6, 7
    s_add_u32 s24, s24, s25
    s_mov_b32 s27, s24""")
    for e in range(4):
        if e and TR: A(f"L_ev1_{e+1}:")
        if e==2: A("s_mov_b32 s12, s46\ns_mov_b32 s13, s47")
        m="0x00ff00ff" if e<2 else "0xff00ff00"
        sr=27 if e<2 else 24
        A(f"s_mov_b32 exec_lo, {m}\ns_mov_b32 exec_hi, {m}")
        for i in range(7*(e&1),7*(e&1)+7):
            if not NOFF: A(f"buffer_load_dwordx4 {w(64+4*i)}, v2, s[12:15], s{sr} offen {WF}\ns_add_u32 s{sr}, s{sr}, 3584")
        if TR or e==3: A("s_mov_b64 exec, -1\ns_branch L_k_loop")
    A(f"""L_ev2:
    v_lshrrev_b32 v2, 4, v0
    s_mul_i32 s24, s5, {XS}
    s_mul_i32 s25, s4, 112
    s_add_u32 s24, s24, s25
    s_add_u32 s24, s24, {XN}
    v_mul_u32_u24 v2, 28, v2
    v_add_u32 v2, s24, v2""")
    for k in range(7): A(f"ds_read_b32 v{24+k}, v2 offset:{4*k}")
    A("s_mov_b32 s24, 0x01000100\ns_mov_b32 s25, 0x03020302\ns_waitcnt lgkmcnt(0)")
    for k in range(6,-1,-1):
        A(f"v_perm_b32 v{25+2*k}, v{24+k}, v{24+k}, s25\nv_perm_b32 v{24+2*k}, v{24+k}, v{24+k}, s24")
    A("s_waitcnt vmcnt(0)")
    for i in range(14):
        bt=W+32+(i&1)*4
        for r in range(4): A(f"v_and_b32 v{bt+r}, v{4+r}, v{24+i}")
        c="0" if i==0 else v(16,4)
        A(f"s_nop 1\nv_mfma_f32_16x16x32_bf16 {v(16,4)}, {w(64+4*i)}, {v(bt,4)}, {c}")
    srd(12,48,1792*448*2)
    A(f"""v_lshrrev_b32 v2, 3, v0
    v_and_b32 v3, 7, v0
    v_mul_u32_u24 v2, 896, v2
    v_lshl_add_u32 v38, v3, 4, v2
    s_and_b32 s24, s6, 3
    s_lshl_b32 s24, s24, 3
    s_add_u32 s24, s24, s4
    s_mul_i32 s24, s24, {56*896}
    s_lshr_b32 s25, s6, 2
    s_lshl_b32 s25, s25, 7
    s_add_u32 s62, s24, s25
    ds_write_b128 v11, v[16:19] offset:8192""")
    setflag(O_WFLAG,2)
    def wdld(i0,i1):
        for i in range(i0,i1):
            if not NOFF: A(f"buffer_load_dwordx4 {w(64+4*i)}, v38, s[12:15], s62 offen {WF}\ns_add_u32 s62, s62, {8*896}")
    wdld(0,7-WDT)
    A("s_branch L_k_loop")
    A("L_ev3:")
    wdld(7-WDT,7)
    A("s_cmp_lg_u32 s4, 0\ns_cbranch_scc1 L_k_loop")
    waitflag(O_WFLAG,2,SLEEP)
    for c in range(8): A(f"ds_read_b128 {w(32+4*c)}, v10 offset:{8192+c*1024}")
    A("s_waitcnt lgkmcnt(0)")
    for c in range(1,8):
        for r in range(4): A(f"v_add_f32 v{W+32+r}, v{W+32+r}, v{W+32+4*c+r}")
    A(f"""v_lshrrev_b32 v2, 4, v0
    v_and_b32 v2, 1, v2
    v_and_b32 v3, 7, v0
    v_lshlrev_b32 v3, 2, v3
    v_lshl_add_u32 v3, v2, 7, v3
    v_add_u32 v3, {FL+O_H}, v3""")
    K0=f2u(-2*0.7978845608028654*1.4426950408889634); K1=f2u(0.044715)
    for r in range(4):
        x=W+32+r; u=W+36; t=W+37
        rnd(x)
        A(f"""v_mov_b32 v{u}, v{x}
        s_nop 1
        v_permlane32_swap_b32 v{x}, v{u}
        s_nop 1
        v_mul_f32 v{t}, v{x}, v{x}
        v_mul_f32 v{t}, {K1}, v{t}
        v_fma_f32 v{t}, v{t}, v{x}, v{x}
        v_mul_f32 v{t}, {K0}, v{t}
        v_exp_f32 v{t}, v{t}
        s_nop 0
        v_add_f32 v{t}, 1.0, v{t}
        v_rcp_f32 v{t}, v{t}
        s_nop 0
        v_mul_f32 v{x}, v{x}, v{t}""")
        rnd(x)
        A(f"v_mul_f32 v{x}, v{x}, v{u}"); rnd(x)
    A("s_mov_b32 exec_lo, 0x00ff00ff\ns_mov_b32 exec_hi, 0")
    for r in range(4): A(f"ds_write_b32 v3, v{W+32+r} offset:{32*r}")
    A(f"""s_mov_b64 exec, -1
    v_lshlrev_b32 v3, 2, v0
    v_add_u32 v2, {FL+O_H}, v3
    s_waitcnt lgkmcnt(0)
    ds_read_b32 v2, v2
    s_lshl_b32 s24, s7, 8
    s_add_u32 s24, s24, {HX}""")
    ltag(1,0)
    A(f"""s_waitcnt lgkmcnt(0)
    v_or_b32 v2, v2, v1
    {"" if NOY&1 else "buffer_store_dword v2, v3, s[20:23], s24 offen YF"}
    s_branch L_k_loop""")
    A("L_mid:")
    stamp(2)
    for k in range(4):
        A(f"v_lshlrev_b32 v{24+2*k}, 16, v{SF+k}\nv_and_b32 v{25+2*k}, 0xffff0000, v{SF+k}")
    A("""v_max3_f32 v3, v24, v25, v26
    v_max3_f32 v3, v3, v27, v28
    v_max3_f32 v3, v3, v29, v30
    v_max_f32 v3, v3, v31""")
    allred("v_max_f32",3,2)
    A(f"s_mov_b64 exec, 1\nds_write_b32 v9, v3 offset:{O_WMAX}\ns_mov_b64 exec, -1")
    setflag(O_WFLAG,3)
    A(f"""s_cmp_lg_u32 s4, {HWV}
    s_cbranch_scc1 L_noh
    s_cmp_ge_u32 s6, 28
    s_cbranch_scc1 L_noh
    v_lshlrev_b32 v2, 4, v0
    v_min_u32 v3, 47, v0
    v_lshlrev_b32 v3, 4, v3
    s_and_b32 s25, s6, 3
    s_mul_i32 s25, s25, 1792
    s_lshl_b32 s24, s5, 13
    s_add_u32 s24, s24, s25
    s_add_u32 s24, s24, {HX}
    L_hp:""")
    wd()
    A(f"""buffer_load_dwordx4 {w(0)}, v2, s[20:23], s24 offen YF
    buffer_load_dwordx4 {w(4)}, v3, s[20:23], s24 offen offset:1024 YF
    s_waitcnt vmcnt(0)""")
    untag(W,8,1)
    A(f"""{"" if NOY&1 else "s_cbranch_vccnz L_hp"}
    ds_write_b128 v10, {w(0)} offset:4096
    ds_write_b128 v10, {w(4)} offset:5120
    L_noh:""")
    A(f"""v_lshrrev_b32 v2, 4, v0
    v_lshlrev_b32 v13, 4, v2
    v_add_u32 v13, {PBUF}, v13
    v_and_b32 v3, 7, v0
    v_lshl_add_u32 v12, v3, 9, v13
    s_lshl_b32 s25, s4, 6
    v_add_u32 v12, s25, v12""")
    waitflag(O_WFLAG,3)
    A(f"ds_read_b32 v3, v8 offset:{O_WMAX}\ns_waitcnt lgkmcnt(0)")
    allred("v_max_f32",3,2,rows=False,cross=False)
    A(f"""s_mov_b32 s26, {C1}
    v_mul_f32 v2, s26, v3
    v_readfirstlane_b32 s56, v3""")
    for k in range(8): A(f"v_fma_f32 v{24+k}, v{24+k}, s26, -v2")
    for k in range(8): A(f"v_exp_f32 v{24+k}, v{24+k}")
    A("v_add_f32 v3, v24, v25")
    for k in range(2,8): A(f"v_add_f32 v3, v3, v{24+k}")
    for k in range(4): A(f"v_cvt_pk_bf16_f32 v{32+k}, v{24+2*k}, v{25+2*k}")
    A("s_mov_b32 exec_lo, 0x00ff00ff\ns_mov_b32 exec_hi, 0x00ff00ff\nds_write_b128 v12, v[32:35]\ns_mov_b64 exec, -1")
    allred("v_add_f32",3,2)
    A(f"v_mul_f32 v3, 0.5, v3\ns_mov_b64 exec, 1\nds_write_b32 v9, v3 offset:{O_WSUM}\ns_mov_b64 exec, -1")
    setflag(O_WFLAG,4)
    A(f"""v_bfe_u32 v3, v0, 2, 4
    v_and_b32 v1, 7, v3
    s_lshl_b32 s25, s4, 1
    v_xor_b32 v1, s25, v1
    v_lshlrev_b32 v1, 5, v1
    v_lshl_add_u32 v1, v3, 9, v1
    v_and_b32 v3, 3, v0
    v_lshl_add_u32 v11, v3, 3, v1
    v_xor_b32 v12, 32, v11""")
    waitflag(O_WFLAG,4)
    A(f"ds_read_b32 v3, v8 offset:{O_WSUM}\ns_waitcnt lgkmcnt(0)")
    allred("v_add_f32",3,2,rows=False,cross=False)
    A(f"""s_nop 0
    v_readfirstlane_b32 s57, v3
    s_cmp_lg_u32 s4, 3
    s_cbranch_scc1 L_noml
    v_mov_b32 v24, s56
    v_mov_b32 v25, v3
    v_mov_b32 v26, 0
    v_mov_b32 v27, 0
    v_mov_b32 v1, {R_ML}""")
    tag(24)
    A(f"""s_mov_b64 exec, 1
    {"" if NOY&2 else "buffer_store_dwordx4 v[24:27], v1, s[16:19], 0 offen YF"}
    s_mov_b64 exec, -1
    L_noml:
    s_mov_b32 s28, 64
    s_cmp_ge_u32 s6, 28
    s_cbranch_scc1 L_noy""")
    A(f"""v_lshrrev_b32 v2, 3, v0
    s_mul_i32 s25, s4, 224
    s_add_u32 s25, s25, {RED+4096}
    v_lshl_add_u32 v2, v2, 2, s25""")
    for i in range(7): A(f"ds_read_b32 v{W+i}, v2 offset:{32*i}")
    A("s_waitcnt vmcnt(0) lgkmcnt(0)")
    for i in range(7):
        for d in range(4):
            A(f"v_lshlrev_b32 v{24+2*d}, 16, v{W+64+4*i+d}\nv_and_b32 v{25+2*d}, 0xffff0000, v{W+64+4*i+d}")
        for e in range(8): A(f"{'v_fmac_f32' if i else 'v_mul_f32'} v{16+e}, v{24+e}, v{W+i}")
    A("s_nop 1")
    for e in range(4): A(f"v_permlane32_swap_b32 v{16+e}, v{20+e}")
    A("s_nop 1")
    for e in range(4): A(f"v_add_f32 v{16+e}, v{16+e}, v{20+e}")
    A("s_nop 1")
    for e in range(2): A(f"v_permlane16_swap_b32 v{16+e}, v{18+e}")
    A("s_nop 1")
    for e in range(2): A(f"v_add_f32 v{16+e}, v{16+e}, v{18+e}")
    for r in (8,):
        A("s_nop 1")
        for e in range(2): A(f"v_add_f32_dpp v{16+e}, v{16+e}, v{16+e} row_ror:{r} row_mask:0xf bank_mask:0xf")
    A(f"""v_lshrrev_b32 v2, 4, v0
    v_and_b32 v3, 7, v0
    v_lshlrev_b32 v2, 3, v2
    v_lshl_add_u32 v2, v3, 5, v2
    s_lshl_b32 s25, s4, 8
    s_add_u32 s25, s25, {RED}
    v_add_u32 v2, s25, v2
    s_mov_b32 exec_lo, 0x00ff00ff
    s_mov_b32 exec_hi, 0x00ff00ff
    ds_write_b64 v2, v[16:17]
    s_mov_b64 exec, -1""")
    setflag(O_WFLAG,5)
    A(f"""s_cmp_lg_u32 s4, 1
    s_cbranch_scc1 L_noy
    v_lshlrev_b32 v2, 2, v0
    v_add_u32 v3, {RED}, v2""")
    waitflag(O_WFLAG,5)
    for c in range(4): A(f"ds_read2st64_b32 {v(16+2*c,2)}, v3 offset0:{2*c} offset1:{2*c+1}")
    ltag(1,0)
    A("v_mov_b32 v3, 0xffffff00\ns_waitcnt lgkmcnt(0)")
    for c in range(1,8): A(f"v_add_f32 v16, v16, v{16+c}")
    A(f"""v_and_or_b32 v16, v16, v3, v1
    {"" if NOY&4 else f"buffer_store_dword v16, v2, s[16:19], 0 offen offset:{R_Y} YF"}""")
    A("L_noy:")
    srd(12,42,4096*448*2)
    if SM and SH==2: A("v_lshrrev_b32 v2, 5, v0\nv_and_b32 v3, 31, v0")
    elif SM: A("v_lshrrev_b32 v2, 5, v0\nv_and_b32 v3, 15, v0\nv_lshl_add_u32 v3, v2, 4, v3\nv_bfe_u32 v2, v0, 4, 1\nv_lshlrev_b32 v2, 1, v2")
    else: A("v_lshrrev_b32 v2, 4, v0\nv_and_b32 v3, 15, v0")
    A(f"""v_mul_u32_u24 v2, {4*896}, v2
    v_lshl_add_u32 v2, v3, 4, v2
    v_cmp_gt_u32 vcc, {24 if SM else 8}, v3
    s_lshr_b32 s24, s6, 1
    s_lshl_b32 s24, s24, 3
    s_add_u32 s24, s24, s4
    s_mul_i32 s24, s24, {32*896}
    v_mov_b32 v3, 0x40000000
    v_cndmask_b32 v38, v3, v2, vcc""")
    def wold(a,r):
        if SM: A(f"s_add_u32 s24, s62, {(8 if SH==2 else 4)*896}")
        for blk in range(4):
            if SM: A(f"buffer_load_dwordx4 {w((a*4+r)*16+blk*4)}, v{38 if blk>>1 else 39}, s[12:15], {'s24' if blk&1 else 's62'} offen offset:{r*896+(blk>>1)*512} {WF}")
            elif not NOWO: A(f"buffer_load_dwordx4 {w((a*4+r)*16+blk*4)}, v{38 if blk==3 else 39}, s[12:15], s62 offen offset:{r*896+blk*256} {WF}")
        if a==0 and r==3: A(f"s_add_u32 s62, s62, {16*896}")
    A("v_mov_b32 v39, v2\ns_mov_b32 s62, s24")
    for k in range(16,24): A(f"v_mov_b32 v{k}, 0")
    assert WO0+9*TR<=127
    A(f"s_mul_i32 s60, s4, {TR}\ns_lshr_b32 s60, s60, {0 if WOS else 3}\ns_add_u32 s60, s60, {WO0}\ns_mov_b32 s27, 0\ns_mov_b32 s63, 0")
    if CT: A(f"""s_cmp_eq_u32 s4, {CW}
    s_cselect_b32 s94, {72+CW}, 0
    s_cselect_b32 s95, s93, 1
    s_cmp_eq_u32 s93, 0
    s_cselect_b32 s94, 0, s94
    s_mov_b32 s93, s95""")
    stamp(3)
    A(f"""L_v_loop:
    s_add_u32 s28, s28, 1
    v_add_u32 v2, s27, v11
    v_add_u32 v3, s27, v12
    ds_read_b128 v[32:35], v13""")
    waitflag(O_READY,"s28",SLEEP)
    A(f"""ds_read_b64_tr_b16 v[24:25], v2
    ds_read_b64_tr_b16 v[26:27], v2 offset:8192
    ds_read_b64_tr_b16 v[28:29], v3
    ds_read_b64_tr_b16 v[30:31], v3 offset:8192
    v_mov_b32 v1, s28
    v_add_u32 v13, 64, v13
    s_add_u32 s27, s27, {SLOT}
    s_and_b32 s27, s27, {NS*SLOT-1}
    s_mov_b64 exec, 1
    ds_write_b32 v9, v1 offset:{O_DONE}
    s_mov_b64 exec, -1
    s_waitcnt lgkmcnt(3)
    v_mfma_f32_16x16x32_bf16 v[16:19], v[24:27], v[32:35], v[16:19]
    s_waitcnt lgkmcnt(1)
    v_mfma_f32_16x16x32_bf16 v[20:23], v[28:31], v[32:35], v[20:23]""")
    if CT:
        pace_pub("s28")
        A(f"s_cmp_lg_u32 s28, s94\ns_cbranch_scc1 L_v_nopg\ns_add_u32 s94, s94, {CV}\ns_cmp_lt_u32 s94, {SCHED[0][1]-3}\ns_cselect_b32 s94, s94, 0")
        pace_get("s28"); A("L_v_nopg:")
    A(f"""s_cmp_lg_u32 s28, s60
    s_cbranch_scc1 L_v_loop
    s_cmp_lg_u32 s28, {128-2*SP}
    s_cbranch_scc1 L_vev""")
    if WM&1: L.append(";WB")
    if SM:
        A("v_and_b32 v1, 1, v0\nv_lshlrev_b32 v1, 4, v1\nv_mov_b32 v24, 0xffff\nv_lshlrev_b32 v24, v1, v24\nv_bfe_u32 v1, v0, 2, 2")
        for r in range(4): A(f"v_cmp_eq_u32 vcc, {r}, v1\ns_nop 1\nv_cndmask_b32 v{4+r}, 0, v24, vcc")
    if SP:
        A(f"""s_lshr_b32 s25, s4, 2
        s_mul_i32 s28, s25, {SP}
        s_add_u32 s28, s28, {129-2*SP}
        s_mul_i32 s25, s25, {SP*SLOT-256}
        s_add_u32 s27, s27, s25
        v_add_u32 v2, s27, v11
        v_add_u32 v3, s27, v12""")
        for pr in range(SP-1):
            A("ds_read_b128 v[32:35], v13\nds_read_b128 v[36:39], v13 offset:64")
            waitflag(O_READY,"s28",SLEEP)
            for hh in range(2):
                for r,a in ((24,2),(28,3)): A(f"ds_read_b64_tr_b16 {v(r,2)}, v{a} offset:{256*hh}\nds_read_b64_tr_b16 {v(r+2,2)}, v{a} offset:{8192+256*hh}")
                for k in range(2): A(f"s_waitcnt lgkmcnt({2-2*k})\nv_mfma_f32_16x16x32_bf16 {v(16+4*k,4)}, {v(24+4*k,4)}, {v(32+4*hh,4)}, {v(16+4*k,4)}")
            A(f"s_add_u32 s28, s28, 1\nv_add_u32 v2, {SLOT}, v2\nv_add_u32 v3, {SLOT}, v3\nv_add_u32 v13, 128, v13")
        A(f"""ds_read_b128 v[32:35], v13
        ds_read_b128 v[36:39], v13 offset:64""")
        if LB: A("s_cmp_gt_u32 s4, 3\ns_cbranch_scc1 L_lb1")
        waitflag(O_READY,"s28",SLEEP)
        if LB: A("s_branch L_lb2\nL_lb1:\ns_barrier\nL_lb2:")
        for k,(r,a) in enumerate(((24,2),(28,3),(8,2),(12,3))):
            A(f"ds_read_b64_tr_b16 {v(r,2)}, v{a} offset:{256*(k>>1)}\nds_read_b64_tr_b16 {v(r+2,2)}, v{a} offset:{8192+256*(k>>1)}")
        if FS: A(f"""s_lshl_b32 s25, s4, 11
        s_add_u32 s25, s25, {RED}
        v_bfe_i32 v1, v0, 1, 1
        v_and_b32 v1, 0xaaaaaaaa, v1
        v_or_b32 v1, 0x44444444, v1""")
        for k,r in enumerate((24,28,8,12)):
            A(f"s_waitcnt lgkmcnt({6-2*k})\nv_mfma_f32_16x16x32_bf16 {v(16+4*(k&1),4)}, {v(r,4)}, {v(32+4*(k>>1),4)}, {v(16+4*(k&1),4)}")
    stamp(4)
    def tail_sm():
        if not FS: A(f"""s_lshl_b32 s25, s4, 11
        s_add_u32 s25, s25, {RED}
        v_bfe_i32 v1, v0, 1, 1
        v_and_b32 v1, 0xaaaaaaaa, v1
        v_or_b32 v1, 0x44444444, v1""")
        for k in range(8): A(f"v_mov_b32 v{24+k}, 0")
        for k in range(0 if FS else 8): A(f"v_mul_f32 v{16+k}, s58, v{16+k}")
        def cv(s): A(f"v_cvt_pk_bf16_f32 v{16+s}, v{16+s}, v{16+s}")
        def mk(s):
            for r in range(4): A(f"v_and_b32 v{32+4*(s&1)+r}, v{4+r}, v{16+s}")
        cv(0); mk(0); cv(1); cv(2)
        ex=["v_and_b32 v2, 15, v0","v_lshl_add_u32 v2, v2, 5, s25","v_bfe_u32 v3, v0, 4, 1","v_lshl_add_u32 v2, v3, 4, v2","v_bfe_u32 v3, v0, 5, 1","v_lshl_add_u32 v2, v3, 9, v2","s_cmp_gt_u32 s4, 2","s_subb_u32 s25, s4, 0"]
        for s in range(8):
            A(f"v_smfmac_f32_16x16x64_bf16 v[24:27], {v(32+4*(s&1),4)}, {w(s*16,8)}, v1")
            if s<7: mk(s+1)
            A(f"v_smfmac_f32_16x16x64_bf16 v[28:31], {v(32+4*(s&1),4)}, {w(s*16+8,8)}, v1")
            if s<5: cv(s+3)
            A(ex[s])
        A(f"""s_lshl_b32 s24, s25, 8
        s_add_u32 s24, s24, {RED}
        v_lshl_add_u32 v3, v0, 2, s24
        s_nop {SM}
        ds_write_b128 v2, v[24:27]
        ds_write_b128 v2, v[28:31] offset:1024""")
    def tail_dn():
        A(f"""s_lshl_b32 s25, s4, 11
        s_add_u32 s25, s25, {RED}
        v_and_b32 v2, 63, v0
        v_lshl_add_u32 v2, v2, 4, s25
        s_cmp_gt_u32 s4, 2
        s_subb_u32 s25, s4, 0
        s_nop 0""")
        for k in range(8): A(f"v_mul_f32 v{16+k}, s58, v{16+k}")
        for k in range(8): A(f"v_cvt_pk_bf16_f32 v{16+k}, v{16+k}, v{16+k}")
        def b1(s):
            for r in range(4): A(f"v_and_b32 v{32+r}, v{4+r}, v{16+s}")
        def b2(s):
            for r in range(4): A(f"v_and_b32_dpp v{36+r}, v{4+r}, v{16+s} row_ror:8 row_mask:0xf bank_mask:0xf")
        b1(0); b2(0)
        for s in range(8):
            for u in range(2):
                c="0" if s==0 else v(24+4*u,4)
                A(f"v_mfma_f32_16x16x32_bf16 {v(24+4*u,4)}, {w(s*16+u*8)}, v[32:35], {c}")
            if s<7: b1(s+1)
            for u in range(2):
                A(f"v_mfma_f32_16x16x32_bf16 {v(24+4*u,4)}, {w(s*16+u*8+4)}, v[36:39], {v(24+4*u,4)}")
            if s<7: b2(s+1)
        if WM&1: L.append(";WE")
        if WM&2: L.append(";WB")
        A(f"""s_lshr_b32 s24, s25, 2
        s_lshl_b32 s24, s24, 10
        s_bitcmp1_b32 s25, 0
        s_cselect_b32 s27, 512, 0
        s_add_u32 s24, s24, s27
        s_bitcmp1_b32 s25, 1
        s_cselect_b32 s27, 128, 0
        s_add_u32 s24, s24, s27
        s_add_u32 s24, s24, {RED}
        v_bfe_u32 v3, v0, 5, 1
        v_and_b32 v1, 7, v0
        v_lshlrev_b32 v3, 8, v3
        v_lshl_add_u32 v3, v1, 4, v3
        v_bfe_u32 v1, v0, 3, 2
        v_lshl_add_u32 v3, v1, 2, v3
        v_add_u32 v3, s24, v3
        ds_write_b128 v2, v[24:27]
        ds_write_b128 v2, v[28:31] offset:1024""")
    tail_sm() if SM else tail_dn()
    if LB: A("s_cmp_gt_u32 s4, 3\ns_cbranch_scc1 L_lb3\ns_barrier\nL_lb3:")
    ltag(1,0)
    A(f"""s_lshl_b32 s25, s25, 8
    v_lshlrev_b32 v2, 2, v0
    s_cmp_eq_u32 s4, 2
    s_waitcnt lgkmcnt(0)
    s_barrier
    s_cbranch_scc1 L_final""")
    for c in range(4): A(f"ds_read2st64_b32 {v(16+2*c,2)}, v3 offset0:{16*c} offset1:{16*c+8}")
    A(f"""s_waitcnt lgkmcnt(2)
    v_add_f32 v16, v16, v17
    v_add_f32 v18, v18, v19
    s_waitcnt lgkmcnt(0)
    v_add_f32 v20, v20, v21
    v_add_f32 v22, v22, v23
    v_add_f32 v16, v16, v18
    v_add_f32 v20, v20, v22
    v_mov_b32 v3, 0xffffff00
    v_add_f32 v16, v16, v20
    {"v_mul_f32 v16, s58, v16" if FS else ""}
    v_and_or_b32 v16, v16, v3, v1
    {"" if NOY&8 else "buffer_store_dword v16, v2, s[16:19], s25 offen sc1"}""")
    stamp(5)
    A("s_branch L_exit")
    if WM&2: L.append(";WE")
    A("L_vev:")
    if WOS:
        A(f"s_add_u32 s60, s60, 1\ns_add_u32 s63, s63, 1")
        for e in range(WOS): A(f"s_cmp_eq_u32 s63, {e+1}\ns_cbranch_scc1 L_wo{e}")
        A("s_branch L_vev2")
        for e in range(WOS):
            A(f"L_wo{e}:")
            for k in range(e*8//WOS,(e+1)*8//WOS): wold(k>>2,k&3)
            if e==WOS-1: A(f"s_lshr_b32 s60, s4, 1\ns_add_u32 s60, s60, {WO0+7*TR+WOS}")
            A("s_branch L_v_loop")
        A("L_vev2:")
    elif TR:
        A(f"s_add_u32 s60, s60, {TR}\ns_add_u32 s63, s63, 1")
        for e in range(8): A(f"s_cmp_eq_u32 s63, {e+1}\ns_cbranch_scc1 L_wo{e}")
        A("s_branch L_vev2")
        for e in range(8):
            A(f"L_wo{e}:"); wold(e>>2,e&3); A("s_branch L_v_loop")
        A("L_vev2:")
    A(f"""s_mov_b32 s60, {128-2*SP}
    s_xor_b32 s24, s7, 1
    s_mul_i32 s24, s24, {RECSZ}
    v_mov_b32 v36, {RECB+R_ML}
    L_mlp:""")
    wd()
    A("buffer_load_dwordx4 v[28:31], v36, s[20:23], s24 offen YF\ns_waitcnt vmcnt(0)")
    untag(28,4,1)
    A(f"""{"" if NOY&2 else "s_cbranch_vccnz L_mlp"}
    v_mov_b32 v2, v28
    v_mov_b32 v3, v29
    v_max_f32 v24, s56, v2
    v_sub_f32 v25, s56, v24
    v_sub_f32 v2, v2, v24
    v_mul_f32 v25, s26, v25
    v_mul_f32 v2, s26, v2
    v_exp_f32 v25, v25
    v_exp_f32 v2, v2
    s_nop 0
    v_mul_f32 v3, v3, v2
    v_fma_f32 v3, v25, s57, v3
    v_rcp_f32 v3, v3
    s_nop 0
    v_mul_f32 v15, v25, v3
    s_nop 0
    v_readfirstlane_b32 s58, v15
    s_cmp_lg_u32 s4, 2
    s_cbranch_scc1 L_v_loop
    s_cmp_ge_u32 s6, 28
    s_cbranch_scc1 L_v_loop
    s_branch L_gy
    L_final:""")
    if WM&2: L.append(";WB")
    stamp(5)
    A(f"""s_cmp_ge_u32 s6, 28
    s_cbranch_scc1 L_exit
    v_and_b32 v1, 63, v0
    v_lshlrev_b32 v1, 2, v1
    v_add_u32 v1, {FL+O_H}, v1
    ds_read_b32 v14, v1
    v_bfe_u32 v2, v0, 2, 4
    v_and_b32 v3, 3, v0
    v_mul_u32_u24 v2, {RECSZ}, v2
    v_lshl_add_u32 v2, v3, 4, v2
    s_mul_i32 s24, s5, {32*RECSZ}
    s_add_u32 s24, s24, {RECB+R_Z}
    s_lshl_b32 s25, s6, 6
    s_add_u32 s24, s24, s25
    s_add_u32 s25, s24, {16*RECSZ}
    s_mov_b64 s[86:87], 0
    L_gp:""")
    wd()
    A(f"""buffer_load_dwordx4 v[24:27], v2, s[20:23], s24 offen sc1
    buffer_load_dwordx4 v[28:31], v2, s[20:23], s25 offen sc1
    s_waitcnt vmcnt(0)
""")
    untag(24,8,1,MP)
    if NOY&16: pass
    elif MP==2: A("""s_and_b64 s[88:89], exec, vcc
    s_cbranch_scc0 L_gok
    s_or_b64 s[86:87], s[86:87], s[88:89]
    s_ff1_i32_b64 s85, s[86:87]
    s_lshl_b64 exec, 15, s85
    s_andn2_b64 s[86:87], s[86:87], exec
    s_branch L_gp
    L_gok:
    s_mov_b64 exec, s[86:87]
    s_mov_b64 s[86:87], 0
    s_cbranch_execnz L_gp
    s_mov_b64 exec, -1""")
    elif MP: A("s_and_b64 exec, exec, vcc\ns_cbranch_scc1 L_gp\ns_mov_b64 exec, -1")
    else: A("s_cbranch_vccnz L_gp")
    A(f"""v_add_f32 v24, v24, v28
    v_add_f32 v25, v25, v29
    v_add_f32 v26, v26, v30
    v_add_f32 v27, v27, v31
    s_nop 0
    v_permlane32_swap_b32 v24, v25
    v_permlane32_swap_b32 v26, v27
    s_nop 0
    v_add_f32 v24, v24, v25
    v_add_f32 v26, v26, v27
    s_nop 1
    v_permlane16_swap_b32 v24, v26
    s_nop 1
    v_add_f32 v24, v24, v26
    s_nop 1
    v_add_f32_dpp v24, v24, v24 row_ror:4 row_mask:0xf bank_mask:0xf
    s_nop 1
    v_add_f32_dpp v24, v24, v24 row_ror:8 row_mask:0xf bank_mask:0xf""")
    rnd(24)
    A("s_waitcnt lgkmcnt(0)\nv_mul_f32 v24, v24, v14")
    rnd(24)
    A(f"""v_and_b32 v1, 0xffff0000, v0
    v_and_b32 v2, 0x0000ffc0, v0
    v_add_f32 v24, v24, v1
    v_lshrrev_b32 v2, 5, v2
    v_cvt_pk_bf16_f32 v24, v24, v24
    buffer_store_short v24, v2, s[8:11], 0 offen {OF} ;
    s_cmp_lg_u32 s2, 0
    s_cbranch_scc1 L_exit
    v_mov_b32 v1, s84
    v_mov_b32 v2, 0
    s_mov_b64 exec, 1
    buffer_store_dword v1, v2, s[20:23], 0 offen sc1
    s_mov_b64 exec, -1
    L_exit:""")
    if WM&2: L.append(";WE")
    if PROF:
        stamp(6)
        A(f"""s_waitcnt lgkmcnt(0)
        s_lshl_b32 s24, s2, 8
        s_add_u32 s24, s24, {PROFBASE+32}
        s_cmp_gt_u32 s4, 2
        s_cbranch_scc1 L_end
        s_lshl_b32 s25, s4, 5
        s_add_u32 s24, s24, s25""")
        for k in range(7): A(f"v_mov_b32 v{24+k}, s{64+2*k}")
        A("""v_mov_b32 v1, 0
        s_mov_b64 exec, 1
        buffer_store_dwordx4 v[24:27], v1, s[20:23], s24 offen
        buffer_store_dwordx4 v[28:31], v1, s[20:23], s24 offen offset:16""")
    A("L_end:\ns_endpgm")
    A(f"""L_gy:
    v_and_b32 v1, 3, v0
    v_bfe_u32 v2, v0, 4, 1
    v_bfe_u32 v3, v0, 5, 1
    v_lshl_add_u32 v2, v2, 1, v3
    v_lshl_add_u32 v3, v1, 2, v2
    v_lshlrev_b32 v2, 3, v2
    v_bfe_u32 v28, s84, v2, 8
    v_lshlrev_b32 v2, 2, v3
    s_and_b32 s24, s7, 0xfc
    s_mul_i32 s24, s24, {RECSZ}
    s_and_b32 s25, s6, 3
    s_lshl_b32 s25, s25, 6
    s_add_u32 s24, s24, s25
    s_add_u32 s24, s24, {RECB+R_Y}
    s_add_u32 s25, s24, {2*RECSZ}
    L_yp:""")
    wd()
    for c in range(4): A(f"buffer_load_dword v{24+c}, v2, s[20:23], s{24+(c>>1)} offen offset:{(c&1)*RECSZ} YF")
    A("s_waitcnt vmcnt(0)")
    for c in range(4): A(f"v_xor_b32 v{24+c}, v28, v{24+c}")
    A(f"""v_or3_b32 v1, v24, v25, v26
    v_or_b32 v1, v1, v27
    v_and_b32 v1, 0xff, v1
    v_cmp_ne_u32 vcc, 0, v1
    {"" if NOY&4 else "s_cbranch_vccnz L_yp"}
    v_add_f32 v24, v24, v25
    v_add_f32 v26, v26, v27
    v_add_f32 v24, v24, v26""")
    rnd(24)
    A(f"""v_mul_f32 v1, {f2u(-1.4426950408889634)}, v24
    v_exp_f32 v1, v1
    s_nop 0
    v_add_f32 v1, 1.0, v1
    v_rcp_f32 v1, v1
    s_nop 0
    v_mul_f32 v14, v24, v1""")
    rnd(14)
    A(f"""v_lshlrev_b32 v1, 2, v0
    v_add_u32 v1, {FL+O_H}, v1
    ds_write_b32 v1, v14
    s_lshl_b32 s24, s6, 4
    v_add_u32 v3, s24, v3
    v_and_b32 v1, 15, v0
    v_cmp_gt_u32 vcc, 4, v1
    v_mov_b32 v1, 1023
    s_nop 0
    v_cndmask_b32 v3, v1, v3, vcc
    v_lshlrev_b32 v2, 1, v3
    s_mul_i32 s24, s5, 896
    s_add_u32 s8, s32, s24
    s_addc_u32 s9, s33, 0
    s_mov_b32 s10, 896
    s_mov_b32 s11, 0x20000
    buffer_load_ushort v1, v2, s[8:11], 0 offen nt
    s_add_u32 s8, s50, s24
    s_addc_u32 s9, s51, 0
    v_lshl_add_u32 v0, v3, 6, v0
    s_waitcnt vmcnt(0)
    v_lshl_add_u32 v0, v1, 16, v0
    s_branch L_v_loop""")
    if WM:
        import re
        def sz(l):
            m=l.split()[0]
            if m.startswith("s_"): return 8 if re.search(r"[ ,](0x[0-9a-f]+|\d{3,})\b",l) or "memreal" in m else 4
            if m in ("v_add_f32","v_mul_f32","v_and_b32","v_xor_b32","v_or_b32","v_mov_b32","v_lshlrev_b32","v_lshrrev_b32","v_add_u32","v_permlane32_swap_b32","v_permlane16_swap_b32") and not re.search(r"[ ,](0x[0-9a-f]+|\d{3,})\b",l): return 4
            return 8
        O=[];on=False;acc=0;n=0;hold=False
        for l in L:
            if l==";WB": on=True; acc=64; continue
            if l==";WE": on=False; continue
            if on and not l.endswith(":"):
                if acc+sz(l)>60 and not hold:
                    O.append(f"L_pad{n}:"); O.append(f"    s_cbranch_execz PADT{n}"); n+=1; acc=0
                acc+=sz(l)
                hold=l.strip().startswith(("s_and_b64 exec","s_cbranch_scc1 L_gp","v_cmp_ne_u32 vcc, 0, v1"))
            O.append(l)
        per=-(-n//WMW)
        for i,l in enumerate(O):
            m=re.search(r"PADT(\d+)",l)
            if m:
                k=int(m.group(1)); O[i]=l.replace(m.group(0),"L_wret" if (k+1)%per==0 or k==n-1 else f"L_pad{k+1}")
        i=O.index(";WENTRY")
        e=["    s_mov_b64 exec, 0"]
        for k in range(WMW):
            if k*per<n: e+=[f"    s_cmp_eq_u32 s4, {WMW-1-k}",f"    s_cbranch_scc1 L_pad{k*per}"]
        O[i:i+1]=e+["L_wret:","    s_mov_b64 exec, -1"]
        L[:]=O
    L.append(f""".section .rodata,"a"
.p2align 6
.amdhsa_kernel {name}
  .amdhsa_next_free_vgpr 168
  .amdhsa_next_free_sgpr 96
  .amdhsa_accum_offset 168
  .amdhsa_group_segment_fixed_size 0
  .amdhsa_kernarg_size 96
  .amdhsa_user_sgpr_count 2
  .amdhsa_user_sgpr_kernarg_segment_ptr 1
  .amdhsa_system_sgpr_workgroup_id_x 1
.end_amdhsa_kernel""")
    return "\n".join(L)+"\n"
if __name__=="__main__":
    kw=eval("dict(%s)"%(sys.argv[1] if len(sys.argv)>1 else ""))
    sys.stdout.write(gen(**kw))
```
